```python
import torch

def _softmax(x, axis=-1):
    return torch.softmax(x, dim=axis)

def _gelu(x):
    return torch.nn.functional.gelu(x, approximate='tanh')

def _silu(x):
    return torch.nn.functional.silu(x)

def _sigmoid(x):
    return torch.sigmoid(x)

def _layernorm(x, axis=-1, eps=1e-05):
    m = x.mean(dim=axis, keepdim=True)
    v = x.var(dim=axis, keepdim=True, unbiased=False)
    return (x - m) / torch.sqrt(v + eps)

def _scatter_add(tgt, idx, src, axis=0):
    return tgt.clone().index_add_(axis, idx, src)

def _segment_sum(src, seg, n):
    out = torch.zeros((n,) + src.shape[1:], dtype=src.dtype)
    return out.index_add_(0, seg, src)

def _pad(x, pw):
    flat = tuple((v for pair in reversed(pw) for v in pair))
    return torch.nn.functional.pad(x, flat)
kernel_name = 'gated_mix__ssm_conv_s4d__mixer_gmlp__prompt'

def setup_inputs():

    _w = lambda a: (lambda t: t.to(torch.bfloat16) if t.is_floating_point() else t)(torch.as_tensor(a))

    def _A_setup():
        Bsz, L, D, N = (1, 2048, 576, 128)
        return {'u': _w((lambda *s: torch.randn(*s, dtype=torch.bfloat16) * 0.05)(Bsz, L, D)), 'log_A_real': _w((lambda *s: torch.randn(*s, dtype=torch.bfloat16) * 3.2)(D, N) * 0.5), 'A_imag': _w((lambda *s: torch.randn(*s, dtype=torch.bfloat16) * 0.05)(D, N) * 3.14), 'C_real': _w((lambda *s: torch.randn(*s, dtype=torch.bfloat16) * 3.2)(D, N) / N ** 0.5), 'C_imag': _w((lambda *s: torch.randn(*s, dtype=torch.bfloat16) * 3.2)(D, N) / N ** 0.5), 'log_dt': _w((lambda *s: torch.randn(*s, dtype=torch.bfloat16) * 0.05)(D) * 0.5 - 4.0), 'D_skip': _w((lambda *s: torch.randn(*s, dtype=torch.bfloat16) * 0.4)(D))}
    _A_in = _A_setup()

    def _B_setup():
        B, S, D, F = (1, 2048, 576, 4608)
        Fh = F // 2
        return {'x': _w((lambda *s: torch.randn(*s, dtype=torch.bfloat16) * 0.05)(B, S, D)), 'w_in': _w((lambda *s: torch.randn(*s, dtype=torch.bfloat16) * 0.2)(D, 2 * Fh)), 'w_sp': _w(0.01 * (lambda *s: torch.randn(*s, dtype=torch.bfloat16) * 0.2)(S, S)), 'b_sp': _w(1.0 + 0.01 * (lambda *s: torch.randn(*s, dtype=torch.bfloat16) * 0.05)(S)), 'w_out': _w((lambda *s: torch.randn(*s, dtype=torch.bfloat16) * 0.05)(Fh, D))}
    _B_in = _B_setup()
    return {'A_u': _A_in['u'], 'A_log_A_real': _A_in['log_A_real'], 'A_A_imag': _A_in['A_imag'], 'A_C_real': _A_in['C_real'], 'A_C_imag': _A_in['C_imag'], 'A_log_dt': _A_in['log_dt'], 'A_D_skip': _A_in['D_skip'], 'B_x': _B_in['x'], 'B_w_in': _B_in['w_in'], 'B_w_sp': _B_in['w_sp'], 'B_b_sp': _B_in['b_sp'], 'B_w_out': _B_in['w_out'], 'gate_w': _w((lambda *s: torch.randn(*s, dtype=torch.bfloat16) * 0.05)(576) * 16.0)}

def reference(A_u, A_log_A_real, A_A_imag, A_C_real, A_C_imag, A_log_dt, A_D_skip, B_x, B_w_in, B_w_sp, B_b_sp, B_w_out, gate_w):

    def _A_ref(u, log_A_real, A_imag, C_real, C_imag, log_dt, D_skip):
        L = u.shape[1]
        dt = torch.exp(log_dt)
        A = -torch.exp(log_A_real) + 1j * A_imag
        C = (C_real + 1j * C_imag) * dt[:, None]
        pos = (lambda x, dt: x.to(dt))(torch.arange(L), log_dt.dtype)
        P = torch.exp((A * dt[:, None])[:, :, None] * pos[None, None, :])
        K = 2.0 * torch.einsum('dn,dnl->dl', C, P).real
        L2 = 2 * L
        u_t = (lambda x, *d: x.permute(*d))(u, 0, 2, 1)
        Kf = (lambda x, *a, **k: torch.fft.rfft(x.float(), *a, **k))(K, L2)
        Uf = (lambda x, *a, **k: torch.fft.rfft(x.float(), *a, **k))(u_t, L2)
        y = (lambda x, *a, **k: torch.fft.irfft(x, *a, **k).to(torch.bfloat16))(Uf * Kf[None, :, :], L2)[:, :, :L]
        y = (lambda x, *d: x.permute(*d))(y, 0, 2, 1)
        return y + u * D_skip[None, None, :]

    def _B_ref(x, w_in, w_sp, b_sp, w_out):
        B, S, D = x.shape
        F = w_in.shape[-1]
        Fh = F // 2
        z = _gelu(torch.einsum('bsd,df->bsf', x, w_in))
        z1 = z[..., :Fh].clone()
        z2 = _layernorm(z[..., Fh:], axis=-1)
        g = torch.einsum('ts,bsf->btf', w_sp, z2) + b_sp[None, :, None]
        return torch.einsum('bsf,fd->bsd', z1 * g, w_out)
    x = A_u
    g = _sigmoid((x * gate_w).sum(-1, keepdims=True))
    a = _A_ref(x, A_log_A_real, A_A_imag, A_C_real, A_C_imag, A_log_dt, A_D_skip)
    b = _B_ref(x, B_w_in, B_w_sp, B_b_sp, B_w_out)
    return g * a + (1 - g) * b
```

```python
class Asm:
    def __init__(self):
        self.L = []
        self.uid = 0
    def e(self, s):
        for line in s.split("\n"):
            self.L.append("    " + line.strip() if not line.strip().endswith(":") else line.strip())
    def c(self, s):
        self.L.append("    ; " + s)
    def label(self, name):
        self.L.append(name + ":")
    def newlabel(self, p="L"):
        self.uid += 1
        return f"{p}_{self.uid}"
    def text(self):
        return "\n".join(self.L) + "\n"

def vr(b, n):
    return f"v[{b}:{b+n-1}]" if n > 1 else f"v{b}"
def sr(b, n):
    return f"s[{b}:{b+n-1}]" if n > 1 else f"s{b}"

def kernel_head(a, name):
    a.L.append(f".globl {name}\n.p2align 8\n.type {name},@function\n{name}:")

def kernel_desc(name, vgpr, sgpr=102, accum=None):
    if accum is None:
        accum = min(256, (vgpr + 3) // 4 * 4)
    return f""".p2align 6
.amdhsa_kernel {name}
  .amdhsa_next_free_vgpr {vgpr}
  .amdhsa_next_free_sgpr {sgpr}
  .amdhsa_accum_offset {accum}
  .amdhsa_group_segment_fixed_size 0
  .amdhsa_kernarg_size 128
  .amdhsa_user_sgpr_count 2
  .amdhsa_user_sgpr_kernarg_segment_ptr 1
  .amdhsa_system_sgpr_workgroup_id_x 1
.end_amdhsa_kernel
"""
```

```python
from asmlib import *
import struct
Z2F = 0x0000000
Z1F = 0x0900000
WPF = 0x1200000
HF  = 0x1A00000
WOF = 0x2300000
STAT = 0x2600000
CPART = 0x2640000
GATE = 0x2660000
KX = 0x2680000
KX_PITCH = 4224
VP = 0x2900000
AT = 0x2B80000
WS_SIZE = 0x10000000
OOB = 0x40000000

def f32(x):
    return "0x%08x" % struct.unpack("<I", struct.pack("<f", x))[0]

class VM:
    def __init__(self):
        self.ops = []
    def issue(self, tag):
        self.ops.append(tag)
    def need(self, tags):
        last = -1
        for i, t in enumerate(self.ops):
            if t in tags:
                last = i
        return min(63, len(self.ops) - 1 - last)

def srd(e, s, ptr_s, nbytes):
    e(f"s_mov_b32 s{s}, s{ptr_s}\ns_mov_b32 s{s+1}, s{ptr_s+1}\ns_mov_b32 s{s+2}, {nbytes:#x}\ns_mov_b32 s{s+3}, 0x00020000")

def tile_ids(e, sf, st, t0, t1):
    e(f"s_and_b32 s{t0}, s2, 7\ns_lshr_b32 s{t1}, s2, 3")
    e(f"s_and_b32 s{sf}, s{t0}, 3\ns_lshl_b32 s{sf}, s{sf}, 2\ns_and_b32 s{st}, s{t1}, 3\ns_add_u32 s{sf}, s{sf}, s{st}")
    e(f"s_lshr_b32 s{st}, s{t0}, 2\ns_lshl_b32 s{st}, s{st}, 3\ns_lshr_b32 s{t1}, s{t1}, 2\ns_add_u32 s{st}, s{st}, s{t1}")
```

```python
from common import *
import math
G1_NW = 5
G1_WSLOT = 19456
G1_XB = G1_NW * G1_WSLOT
G1_NX = 3
G1_DUMMY = G1_XB + G1_NX * 16384
G1_LDS = G1_DUMMY + 1024
G1_VGPR = 168

def gelu8(e, src, tmp, dst, sc0, sc1):
    n = len(src)
    for i in range(n): e(f"v_mul_f32 v{tmp[i]}, v{src[i]}, v{src[i]}")
    for i in range(n): e(f"v_fma_f32 v{tmp[i]}, v{tmp[i]}, s{sc1}, v{sc0}")
    for i in range(n): e(f"v_mul_f32 v{tmp[i]}, v{tmp[i]}, v{src[i]}")
    for i in range(n): e(f"v_exp_f32 v{tmp[i]}, v{tmp[i]}")
    for i in range(n): e(f"v_add_f32 v{tmp[i]}, 1.0, v{tmp[i]}")
    for i in range(n): e(f"v_rcp_f32 v{tmp[i]}, v{tmp[i]}")
    for i in range(n): e(f"v_mul_f32 v{dst[i]}, v{tmp[i]}, v{src[i]}")

def gen_g1(a):
    e = a.e
    kernel_head(a, "g1_kernel")
    ACC = 24; WF = 96; XF = 132; ST = 148
    vLane16 = 1; vWo = [2, 3, 4]; vXo = [5, 6]; vWr = [7, 8]; vXr = [9, 10]; vC0 = 11
    e("s_cmp_ge_u32 s2, 256\ns_cbranch_scc1 L_g1_done")
    e("s_load_dwordx2 s[4:5], s[0:1], 0")
    e("s_load_dwordx2 s[6:7], s[0:1], 64")
    e("s_load_dwordx2 s[12:13], s[0:1], 120")
    e("v_lshrrev_b32 v12, 6, v0\nv_and_b32 v13, 63, v0")
    e("v_lshlrev_b32 v1, 4, v13")
    e("v_readfirstlane_b32 s20, v12")
    tile_ids(e, 21, 22, 23, 24)
    e(f"s_mov_b32 s25, {(1<<32)//38 + 1}\ns_movk_i32 s26, 38\ns_movk_i32 s27, 9216")
    for i in range(3):
        e(f"v_lshlrev_b32 v14, 6, v12\nv_add_u32 v14, v14, v13\nv_add_u32 v14, {i*512}, v14")
        e("v_mul_hi_u32 v15, v14, s25")
        e("v_mul_lo_u32 v16, v15, s26\nv_sub_u32 v16, v14, v16")
        e("v_bfe_u32 v17, v15, 2, 2\nv_lshlrev_b32 v17, 3, v17")
        e("v_lshrrev_b32 v18, 4, v15\nv_lshl_add_u32 v17, v18, 2, v17")
        e("v_and_b32 v18, 3, v15\nv_add_u32 v17, v17, v18")
        e("v_mul_lo_u32 v17, v17, s27")
        e(f"v_lshl_add_u32 v{vWo[i]}, v16, 4, v17")
        e(f"v_mov_b32 v18, {OOB:#x}")
        e(f"v_cmp_gt_u32 vcc, 36, v16\ns_nop 1\nv_cndmask_b32 v{vWo[i]}, v18, v{vWo[i]}, vcc")
        e(f"v_cmp_gt_u32 vcc, 32, v15\ns_nop 1\nv_cndmask_b32 v{vWo[i]}, v18, v{vWo[i]}, vcc")
    e("s_movk_i32 s27, 1152")
    e("s_cmp_ge_u32 s21, 8\ns_cselect_b64 s[28:29], -1, 0")
    for h in range(2):
        e(f"v_lshlrev_b32 v14, 3, v12\nv_lshrrev_b32 v15, 3, v13\nv_add_u32 v14, v14, v15\nv_add_u32 v14, {64*h}, v14")
        e("v_bfe_u32 v15, v14, 1, 3\nv_and_b32 v16, 7, v13\nv_xor_b32 v15, v15, v16")
        e("v_and_b32 v16, 0x60, v14")
        e("v_bfe_u32 v17, v14, 2, 2\nv_lshl_add_u32 v16, v17, 3, v16")
        e("v_bfe_u32 v17, v14, 4, 1\nv_lshl_add_u32 v16, v17, 2, v16")
        e("v_and_b32 v17, 3, v14\nv_add_u32 v16, v16, v17")
        e("v_cndmask_b32 v16, v14, v16, s[28:29]")
        e("v_mul_lo_u32 v16, v16, s27")
        e(f"v_lshl_add_u32 v{vXo[h]}, v15, 4, v16")
    e("v_lshrrev_b32 v14, 4, v13\nv_lshlrev_b32 v14, 2, v14\nv_bfe_u32 v15, v13, 2, 2\nv_add_u32 v14, v14, v15")
    e("v_mul_u32_u24 v14, 608, v14")
    e("v_and_b32 v15, 3, v13\nv_lshl_add_u32 v14, v15, 3, v14")
    e("v_lshrrev_b32 v15, 2, v12\nv_mul_u32_u24 v15, 288, v15")
    e(f"v_add_u32 v{vWr[0]}, v14, v15\nv_add_u32 v{vWr[1]}, {3*G1_WSLOT}, v{vWr[0]}")
    e("v_and_b32 v14, 3, v12\nv_lshlrev_b32 v14, 5, v14\nv_and_b32 v15, 15, v13\nv_add_u32 v14, v14, v15\nv_lshlrev_b32 v14, 7, v14")
    e("v_bfe_u32 v15, v13, 1, 3\nv_lshrrev_b32 v16, 4, v13\nv_xor_b32 v15, v15, v16\nv_lshl_add_u32 v14, v15, 4, v14")
    e(f"v_add_u32 v{vXr[0]}, {G1_XB}, v14\nv_xor_b32 v{vXr[1]}, 64, v{vXr[0]}")
    e("s_waitcnt lgkmcnt(0)")
    srd(e, 32, 4, 2359296)
    srd(e, 36, 6, 5308416)
    srd(e, 40, 12, WS_SIZE)
    e("s_mul_i32 s44, s21, 576")
    e("s_mul_i32 s45, s22, 147456")
    e("s_lshl_b32 s46, s20, 10")
    e("s_cmp_lt_u32 s20, 3")
    for s in range(G1_NW):
        e(f"s_add_u32 s47, s46, {s*G1_WSLOT + 16384}")
        e("s_cmp_lt_u32 s20, 3")
        e(f"s_cselect_b32 s{50+s}, s47, {G1_DUMMY}")
    vm = VM()
    def dmaW(n, i):
        slot = n % G1_NW
        if i < 2: m = f"s_add_u32 m0, s46, {slot*G1_WSLOT + i*8192}"
        else: m = f"s_mov_b32 m0, s{50+slot}"
        vm.issue(("W", n))
        return f"{m}\ns_add_u32 s47, s44, {n*32*9216}\nbuffer_load_dwordx4 v{vWo[i]}, s[36:39], s47 offen lds"
    def dmaX(j, h):
        slot = j % G1_NX
        vm.issue(("X", j))
        return f"s_add_u32 m0, s46, {G1_XB + slot*16384 + h*8192}\ns_add_u32 s47, s45, {j*128}\nbuffer_load_dwordx4 v{vXo[h]}, s[32:35], s47 offen lds"
    def rdW(n, fb, j):
        slot = n % G1_NW
        base = vWr[0]; off = slot * G1_WSLOT + j * 9728 + fb * 32
        if slot >= 3: base = vWr[1]; off -= 3 * G1_WSLOT
        return f"ds_read_b64_tr_b16 {vr(WF+fb*4+j*2,2)}, v{base} offset:{off}"
    def rdX(n, j):
        st = n // 2; kh = n % 2
        return f"ds_read_b128 {vr(XF+(n%2)*8+j*4,4)}, v{vXr[kh]} offset:{(st%G1_NX)*16384 + j*2048}"
    e(dmaX(0, 0)); e(dmaX(0, 1))
    for i in range(3): e(dmaW(0, i))
    for i in range(3): e(dmaW(1, i))
    e(dmaX(1, 0)); e(dmaX(1, 1))
    for i in range(3): e(dmaW(2, i))
    for i in range(3): e(dmaW(3, i))
    for i in range(72): e(f"v_mov_b32 v{ACC+i}, 0")
    e(f"v_mov_b32 v{vC0}, {f32(-2.302208198)}\ns_mov_b32 s48, {f32(-2.302208198*0.044715)}")
    e(f"s_waitcnt vmcnt({vm.need([('X',0),('W',0)])})\ns_barrier")
    e(rdX(0, 0)); e(rdX(0, 1))
    for fb in range(9):
        e(rdW(0, fb, 0)); e(rdW(0, fb, 1))
    e("s_cmp_ge_u32 s21, 8\ns_cbranch_scc1 L_g1_z2")
    saved = list(vm.ops)
    for typ in ("z1", "z2"):
        vm.ops = list(saved)
        if typ == "z2": a.label("L_g1_z2")
        for i in range(18):
            last = (i == 17)
            if not last:
                need = [("W", i + 1), ("X", (i + 1) // 2)]
                e(f"s_waitcnt vmcnt({vm.need(need)})\ns_barrier")
            batch = []
            xj = i // 2 + 2
            if xj < 9: batch.append(lambda xj=xj, i=i: dmaX(xj, i % 2))
            if i + 4 < 18:
                for q in range(3): batch.append(lambda q=q, i=i: dmaW(i + 4, q))
            if not last:
                e(rdX(i + 1, 0)); e(rdX(i + 1, 1))
            for fb in range(9):
                if fb == 0: e(f"s_waitcnt lgkmcnt({2 if not last else 0})" if False else ("s_waitcnt lgkmcnt(14)" if not last else "s_waitcnt lgkmcnt(12)"))
                elif fb % 2 == 0: e("s_waitcnt lgkmcnt(12)" if not last else f"s_waitcnt lgkmcnt({max(0, 12 - 2*fb)})")
                for j in range(2):
                    acc = ACC + fb * 8 + j * 4
                    w = vr(WF + fb * 4, 4); x = vr(XF + (i % 2) * 8 + j * 4, 4)
                    if typ == "z1": e(f"v_mfma_f32_16x16x32_bf16 {vr(acc,4)}, {w}, {x}, {vr(acc,4)}")
                    else: e(f"v_mfma_f32_16x16x32_bf16 {vr(acc,4)}, {x}, {w}, {vr(acc,4)}")
                if not last:
                    e(rdW(i + 1, fb, 0)); e(rdW(i + 1, fb, 1))
                if fb % 2 == 1 and batch:
                    e(batch.pop(0)())
            assert not batch
        e("s_nop 7\ns_nop 1")
        e("s_lshr_b32 s47, s20, 2\ns_and_b32 s49, s20, 3")
        if typ == "z1":
            e("s_lshl_b32 s55, s21, 1\ns_add_u32 s55, s55, s47\ns_lshl_b32 s55, s55, 4\ns_add_u32 s55, s55, s22\ns_lshl_b32 s55, s55, 2\ns_add_u32 s55, s55, s49")
            e(f"s_mul_i32 s55, s55, 9216\ns_add_u32 s55, s55, {Z1F}")
        else:
            e("s_sub_u32 s55, s21, 8\ns_lshl_b32 s55, s55, 1\ns_add_u32 s56, s55, s47\ns_lshl_b32 s55, s56, 4\ns_add_u32 s55, s55, s22\ns_lshl_b32 s55, s55, 2\ns_add_u32 s55, s55, s49")
            e(f"s_lshl_b32 s57, s55, 8\ns_add_u32 s57, s57, {STAT}")
            e(f"s_mul_i32 s55, s55, 9216\ns_add_u32 s55, s55, {Z2F}")
            for i in range(16): e(f"v_mov_b32 v{ST+i}, 0")
        for fb in range(9):
            src = [ACC + fb * 8 + i for i in range(8)]
            tmp = [WF + (fb % 2) * 16 + i for i in range(8)]
            pk = WF + (fb % 2) * 16 + 8
            gelu8(e, src, tmp, src, vC0, 48)
            for q in range(4): e(f"v_cvt_pk_bf16_f32 v{pk+q}, v{src[2*q]}, v{src[2*q+1]}")
            if typ == "z2":
                for i in range(8): e(f"v_add_f32 v{ST+i}, v{ST+i}, v{src[i]}")
                for i in range(8): e(f"v_fmac_f32 v{ST+8+i}, v{src[i]}, v{src[i]}")
            e(f"s_add_u32 s47, s55, {fb*1024}")
            e(f"buffer_store_dwordx4 {vr(pk,4)}, v1, s[40:43], s47 offen")
        if typ == "z2":
            for sh in (8, 4, 2, 1):
                for i in range(16): e(f"v_add_f32_dpp v{ST+i}, v{ST+i}, v{ST+i} row_ror:{sh} row_mask:0xf bank_mask:0xf")
            e("v_lshrrev_b32 v14, 8, v1\nv_lshlrev_b32 v14, 6, v14")
            e("v_and_b32 v15, 0xf0, v1\nv_cmp_eq_u32 vcc, 0, v15\ns_and_saveexec_b64 s[58:59], vcc")
            for q in range(4): e(f"buffer_store_dwordx4 {vr(ST+4*q,4)}, v14, s[40:43], s57 offen offset:{q*16}")
        e("s_endpgm")
    a.label("L_g1_done")
    e("s_endpgm")
```

```python
from common import *
G2_LDS = 77824
G2_VGPR = 192
G2_NCONV = 288
G2_GRID = 256 + G2_NCONV

def gen_g2_gemm(a):
    e = a.e
    ACC = 16; AF = 88; BF = 124
    e("s_load_dwordx2 s[6:7], s[0:1], 80")
    e("v_add_u32 v4, 36864, v1")
    tile_ids(e, 23, 24, 21, 22)
    e(f"s_mul_i32 s26, s23, 589824\ns_lshl_b32 s27, s20, 10\ns_add_u32 s26, s26, s27\ns_add_u32 s26, s26, {Z2F}")
    e(f"s_cmp_lt_u32 s20, 2\ns_mov_b32 s28, {OOB:#x}\ns_cselect_b32 s28, 16384, s28")
    for s in range(4):
        e(f"s_add_u32 s29, s27, {s*18432+16384}\ns_add_u32 s33, s27, 73728\ns_cmp_lt_u32 s20, 2\ns_cselect_b32 s{50+s}, s29, s33")
    e(f"s_lshl_b32 s30, s24, 19\ns_lshl_b32 s31, s20, 17\ns_add_u32 s30, s30, s31\ns_add_u32 s30, s30, {WPF}")
    def batch(slot):
        out = []
        for q in range(4):
            out.append(f"buffer_load_dwordx4 {vr(BF+slot*16+q*4,4)}, v1, s[40:43], s30 offen offset:{q*1024}")
        for i in range(4):
            out.append(f"s_add_u32 m0, s27, {slot*18432 + i*4096}\ns_add_u32 s33, s26, {i*4096}\nbuffer_load_dwordx4 v1, s[40:43], s33 offen lds")
        out.append(f"s_mov_b32 m0, s{50+slot}\ns_add_u32 s33, s26, s28\nbuffer_load_dwordx4 v1, s[40:43], s33 offen lds")
        return out
    adv = "s_add_u32 s26, s26, 18432\ns_add_u32 s30, s30, 4096"
    def ldsread(slot, half, fb):
        off = slot * 18432 + half * 9216 + fb * 1024
        base = "v1"
        if off >= 36864:
            off -= 36864; base = "v4"
        return f"ds_read_b128 {vr(AF+fb*4,4)}, {base} offset:{off}"
    def mfma(fb, j, bslot, half):
        acc = ACC + (fb * 2 + j) * 4
        b = BF + bslot * 16 + (half * 2 + j) * 4
        return f"v_mfma_f32_16x16x32_bf16 {vr(acc,4)}, {vr(AF+fb*4,4)}, {vr(b,4)}, {vr(acc,4)}"
    e("v_and_b32 v5, 15, v3\nv_lshlrev_b32 v6, 6, v5\nv_lshlrev_b32 v5, 1, v5")
    e(f"s_lshl_b32 s34, s24, 2\ns_add_u32 s34, s34, s20\ns_lshl_b32 s35, s34, 11\ns_add_u32 s35, s35, {CPART}\ns_lshl_b32 s34, s34, 6")
    for j in range(2):
        for q in range(4):
            e(f"buffer_load_dwordx4 {vr(AF+j*16+q*4,4)}, v6, s[40:43], s35 offen offset:{j*1024+q*16}")
    e("s_waitcnt lgkmcnt(0)")
    srd(e, 36, 6, 4096)
    e(f"buffer_load_ushort v7, v5, s[36:39], s34 offen\nbuffer_load_ushort v8, v5, s[36:39], s34 offen offset:32")
    for s in range(3):
        for x in batch(s): e(x)
        e(adv)
    e("s_waitcnt vmcnt(27)")
    for j in range(2):
        b = AF + j * 16
        for q in range(8): e(f"v_add_f32 v{b+q}, v{b+q}, v{b+8+q}")
        for q in range(4): e(f"v_add_f32 v{b+q}, v{b+q}, v{b+4+q}")
        for q in range(2): e(f"v_add_f32 v{b+q}, v{b+q}, v{b+2+q}")
        e(f"v_add_f32 v{b}, v{b}, v{b+1}\nv_lshlrev_b32 v{7+j}, 16, v{7+j}\nv_sub_f32 v{7+j}, v{7+j}, v{b}")
    for fb in range(9):
        for j in range(2):
            for i in range(4): e(f"v_mov_b32 v{ACC+(fb*2+j)*4+i}, v{7+j}")
    e("s_waitcnt vmcnt(18)\ns_barrier")
    for fb in range(9): e(ldsread(0, 0, fb))
    for fb in range(9):
        e("s_waitcnt lgkmcnt(8)")
        e(mfma(fb, 0, 0, 0)); e(mfma(fb, 1, 0, 0))
        e(ldsread(0, 1, fb))
    e("s_mov_b32 s38, 0")
    def body(u, issue, wait, tail=False, extra=None):
        nxt = (u + 1) % 4
        if not tail:
            e(f"s_waitcnt vmcnt({wait})\ns_barrier")
        o = batch((u + 3) % 4) if issue else list(extra or [])
        for fb in range(9):
            if tail: e(f"s_waitcnt lgkmcnt({8-fb})")
            elif fb % 3 == 0: e("s_waitcnt lgkmcnt(6)")
            e(mfma(fb, 0, u, 1))
            if o: e(o.pop(0))
            e(mfma(fb, 1, u, 1))
            if not tail: e(ldsread(nxt, 0, fb))
        if tail: return
        for fb in range(9):
            if fb % 3 == 0: e("s_waitcnt lgkmcnt(6)")
            e(mfma(fb, 0, nxt, 0))
            e(mfma(fb, 1, nxt, 0))
            e(ldsread(nxt, 1, fb))
        if issue: e(adv)
    a.label("L_g2_loop")
    for u in range(4): body(u, True, 9)
    e("s_add_u32 s38, s38, 1\ns_cmp_lt_u32 s38, 7\ns_cbranch_scc1 L_g2_loop")
    body(0, True, 9)
    e(f"s_lshl_b32 s34, s23, 4\ns_add_u32 s34, s34, s24\ns_lshl_b32 s34, s34, 2\ns_add_u32 s34, s34, s20\ns_mul_i32 s34, s34, 9216\ns_add_u32 s34, s34, {Z1F}\ns_add_u32 s35, s34, 4096\ns_add_u32 s39, s34, 8192")
    z1r = [BF + 4 * q for q in range(8)] + [188]
    def z1load(fb):
        s = ("s34", "s35", "s39")[fb // 4]
        return f"buffer_load_dwordx4 {vr(z1r[fb],4)}, v1, s[40:43], {s} offen offset:{(fb%4)*1024}"
    body(1, False, 9, extra=[z1load(fb) for fb in (0, 1, 2, 3, 8)])
    body(2, False, 5, extra=[z1load(fb) for fb in (4, 5, 6, 7)])
    body(3, False, 0, tail=True)
    e("s_lshl_b32 s34, s24, 1\ns_lshr_b32 s35, s20, 1\ns_add_u32 s34, s34, s35\ns_mul_i32 s34, s34, 72")
    e("s_mul_i32 s35, s23, 9\ns_lshr_b32 s39, s35, 1\ns_add_u32 s34, s34, s39\ns_lshl_b32 s34, s34, 12")
    e(f"s_and_b32 s39, s20, 1\ns_lshl_b32 s39, s39, 11\ns_add_u32 s34, s34, s39\ns_add_u32 s34, s34, {HF}")
    e("s_waitcnt vmcnt(0)\ns_nop 4")
    T = AF
    def prod(fb, j, dst):
        z = z1r[fb] + j * 2; acc = ACC + (fb * 2 + j) * 4
        e(f"v_lshlrev_b32 v8, 16, v{z}\nv_and_b32 v9, 0xffff0000, v{z}\nv_lshlrev_b32 v10, 16, v{z+1}\nv_and_b32 v11, 0xffff0000, v{z+1}")
        for i in range(4): e(f"v_mul_f32 v{8+i}, v{8+i}, v{acc+i}")
        e(f"v_cvt_pk_bf16_f32 v{dst}, v8, v9\nv_cvt_pk_bf16_f32 v{dst+1}, v10, v11")
    e("s_bitcmp1_b32 s23, 0\ns_cbranch_scc1 L_g2_odd")
    for par in range(2):
        if par: a.label("L_g2_odd")
        n = 0
        for kcl in range(5):
            fbs = [2 * kcl - par, 2 * kcl + 1 - par]
            for j in range(2):
                d = T + (n % 8) * 4; n += 1
                ok = [0 <= fb <= 8 for fb in fbs]
                for h in range(2):
                    if ok[h]: prod(fbs[h], j, d + 2 * h)
                e(f"s_add_u32 s35, s34, {kcl*4096 + j*1024}")
                if ok[0] and ok[1]: e(f"buffer_store_dwordx4 {vr(d,4)}, v1, s[40:43], s35 offen")
                elif ok[0]: e(f"buffer_store_dwordx2 {vr(d,2)}, v1, s[40:43], s35 offen")
                else: e(f"buffer_store_dwordx2 {vr(d+2,2)}, v1, s[40:43], s35 offen offset:8")
        e("s_endpgm")

CH_BYTES = 38400
COPY = 4160
VOFF = 8 * COPY
def gen_conv(a):
    e = a.e
    a.label("L_conv")
    e("s_sub_u32 s21, s2, 256\ns_lshl_b32 s21, s21, 1\ns_lshr_b32 s22, s20, 1\ns_add_u32 s21, s21, s22\ns_and_b32 s23, s20, 1")
    e(f"s_mul_i32 s24, s22, {CH_BYTES}")
    e(f"s_lshl_b32 s25, s21, 12\ns_lshl_b32 s26, s23, 11\ns_add_u32 s25, s25, s26\ns_add_u32 s25, s25, {VP}")
    e(f"s_mul_i32 s26, s23, 2560\ns_add_u32 s26, s26, s24")
    for p in range(2):
        e(f"s_add_u32 m0, s26, {VOFF + 256 + p*1280}\ns_add_u32 s27, s25, {p*1024}\nbuffer_load_dwordx4 v1, s[40:43], s27 offen lds")
    e(f"s_mul_i32 s25, s21, {KX_PITCH}\ns_lshl_b32 s26, s23, 11\ns_add_u32 s25, s25, s26\ns_add_u32 s25, s25, {KX + 112}")
    W = 16
    for it in range(2):
        e(f"buffer_load_dwordx4 {vr(W+it*32,4)}, v1, s[40:43], s25 offen offset:{it*1024}")
        e(f"buffer_load_dwordx4 {vr(W+it*32+4,4)}, v1, s[40:43], s25 offen offset:{it*1024+16}")
    e("v_mov_b32 v8, 0\nv_mov_b32 v9, 0\nv_mov_b32 v10, 0\nv_mov_b32 v11, 0")
    e(f"v_lshrrev_b32 v4, 4, v3\nv_mul_u32_u24 v4, 1280, v4\nv_and_b32 v5, 15, v3\nv_lshl_add_u32 v4, v5, 4, v4\nv_add_u32 v4, s24, v4")
    e(f"ds_write_b128 v4, v[8:11] offset:{VOFF}")
    e(f"v_lshrrev_b32 v4, 2, v3\nv_and_b32 v4, 7, v4\nv_mul_u32_u24 v4, {COPY}, v4\nv_and_b32 v5, 3, v3\nv_min_u32 v5, 2, v5\nv_lshl_add_u32 v4, v5, 4, v4\nv_add_u32 v4, s24, v4")
    e("ds_write_b128 v4, v[8:11]")
    e("s_lshl_b32 s26, s23, 11\ns_add_u32 s26, s26, s24\nv_add_u32 v4, s26, v1")
    e("s_waitcnt vmcnt(0)")
    for it in range(2):
        w = W + it * 32; w2 = w + 8; qe = w + 14; qo = w + 20
        for i in range(6): e(f"v_mov_b32 v{w2+i}, v{w+1+i}")
        for i in range(6): e(f"v_alignbit_b32 v{qe+i}, v{w+i+1}, v{w+i}, 16")
        for i in range(6): e(f"v_alignbit_b32 v{qo+i}, v{w+i+2}, v{w+i+1}, 16")
        src = {0: w + 4, 2: w2 + 2, 4: w + 2, 6: w2, 1: qo + 2, 3: qe + 2, 5: qo, 7: qe}
        for s in range(8):
            e(f"ds_write_b128 v4, {vr(src[s],4)} offset:{s*COPY + 48 + it*1024}")
    e(f"v_and_b32 v5, 7, v3\nv_sub_u32 v5, 7, v5\nv_mul_u32_u24 v5, {COPY}, v5\nv_bfe_u32 v6, v3, 3, 1\nv_lshrrev_b32 v7, 4, v3\nv_sub_u32 v6, v6, v7\nv_add_u32 v6, 3, v6\nv_lshl_add_u32 v5, v6, 4, v5")
    e("s_lshl_b32 s26, s23, 6\ns_add_u32 s26, s26, s24\nv_add_u32 v5, s26, v5")
    e(f"v_mul_u32_u24 v6, 1280, v7\nv_and_b32 v7, 15, v3\nv_lshl_add_u32 v6, v7, 4, v6")
    e(f"s_lshl_b32 s26, s23, 4\ns_sub_u32 s26, s24, s26\ns_add_u32 s26, s26, {VOFF + (16-62)*16}\nv_add_u32 v6, s26, v6")
    ACC = 96; BUF = 16
    for i in range(32): e(f"v_mov_b32 v{ACC+i}, 0")
    e("s_waitcnt lgkmcnt(0)\ns_barrier")
    its = list(range(0, 64, 2))
    def reads(n):
        r0 = its[n]; b = BUF + (n % 3) * 24; q0 = r0 >> 4
        o = [f"ds_read_b128 {vr(b,4)}, v5 offset:{64*r0}", f"ds_read_b128 {vr(b+4,4)}, v5 offset:{64*r0+32}"]
        for Q in range(q0, 4): o.append(f"ds_read_b128 {vr(b+8+4*Q,4)}, v6 offset:{256*Q + 16*(62-r0)}")
        return o
    for x in reads(0) + reads(1): e(x)
    for n in range(32):
        r0 = its[n]; b = BUF + (n % 3) * 24; q0 = r0 >> 4
        nx = reads(n + 2) if n + 2 < 32 else []
        pend = len(reads(n + 1)) if n + 1 < 32 else 0
        e(f"s_waitcnt lgkmcnt({pend})")
        for Q in range(q0, 4):
            for mb in range(2):
                acc = ACC + (Q * 2 + mb) * 4
                e(f"v_mfma_f32_16x16x32_bf16 {vr(acc,4)}, {vr(b+4*mb,4)}, {vr(b+8+4*Q,4)}, {vr(acc,4)}")
                if nx: e(nx.pop(0))
        for x in nx: e(x)
    e("s_nop 7\ns_barrier")
    e("v_add_u32 v4, s24, v1")
    e("s_cmp_eq_u32 s23, 0\ns_cbranch_scc1 L_conv_fin")
    for t in range(8): e(f"ds_write_b128 v4, {vr(ACC+4*t,4)} offset:{t*1024}")
    e("s_waitcnt lgkmcnt(0)\ns_barrier\ns_endpgm")
    a.label("L_conv_fin")
    e("s_barrier")
    for t in range(8): e(f"ds_read_b128 {vr(BUF+4*t,4)}, v4 offset:{t*1024}")
    e("v_and_b32 v5, 15, v3\nv_lshlrev_b32 v5, 6, v5\nv_lshrrev_b32 v6, 4, v3\nv_lshl_add_u32 v5, v6, 3, v5")
    e(f"s_lshl_b32 s25, s21, 12\ns_add_u32 s25, s25, {AT}")
    e("s_waitcnt lgkmcnt(0)")
    for t in range(8):
        for i in range(4): e(f"v_add_f32 v{ACC+4*t+i}, v{ACC+4*t+i}, v{BUF+4*t+i}")
        e(f"v_cvt_pk_bf16_f32 v{48+2*t}, v{ACC+4*t}, v{ACC+4*t+1}\nv_cvt_pk_bf16_f32 v{49+2*t}, v{ACC+4*t+2}, v{ACC+4*t+3}")
        e(f"buffer_store_dwordx2 {vr(48+2*t,2)}, v5, s[40:43], s25 offen offset:{(t>>1)*1024 + (t&1)*32}")
    e("s_endpgm")

def gen_g2(a):
    e = a.e
    kernel_head(a, "g2_kernel")
    e(f"s_cmp_ge_u32 s2, {G2_GRID}\ns_cbranch_scc1 L_g2_done")
    e("s_load_dwordx2 s[4:5], s[0:1], 120")
    e("v_lshrrev_b32 v2, 6, v0\nv_and_b32 v3, 63, v0\nv_lshlrev_b32 v1, 4, v3")
    e("v_readfirstlane_b32 s20, v2")
    e("s_waitcnt lgkmcnt(0)")
    srd(e, 40, 4, WS_SIZE)
    e("s_cmp_ge_u32 s2, 256\ns_cbranch_scc1 L_conv")
    gen_g2_gemm(a)
    gen_conv(a)
    a.label("L_g2_done")
    e("s_endpgm")
```

```python
from common import *
G3_RING = 4
G3_STAGE = 20480
G3_ATB = G3_RING * G3_STAGE
G3_LDS = G3_ATB + 12288
G3_VGPR = 128

def gen_g3(a):
    e = a.e
    kernel_head(a, "g3_kernel")
    ACC = 16; AF = 36; BF = 56
    e("s_cmp_ge_u32 s2, 256\ns_cbranch_scc1 L_g3_done")
    e("s_load_dwordx2 s[4:5], s[0:1], 120")
    e("s_load_dwordx2 s[6:7], s[0:1], 104")
    e("v_lshrrev_b32 v2, 6, v0\nv_and_b32 v3, 63, v0\nv_lshlrev_b32 v1, 4, v3")
    e("v_readfirstlane_b32 s20, v2")
    e("v_add_u32 v4, 40960, v1")
    e("s_and_b32 s21, s2, 7\ns_lshr_b32 s22, s2, 3\ns_lshl_b32 s21, s21, 2\ns_and_b32 s23, s22, 3\ns_add_u32 s21, s21, s23\ns_lshr_b32 s22, s22, 2")
    e("s_mul_i32 s23, s22, 9\ns_add_u32 s23, s23, 1\ns_lshr_b32 s23, s23, 1")
    e("s_waitcnt lgkmcnt(0)")
    srd(e, 40, 4, WS_SIZE)
    srd(e, 44, 6, 2359296)
    e(f"s_mul_i32 s26, s20, 36864\ns_lshl_b32 s27, s23, 10\ns_add_u32 s26, s26, s27\ns_add_u32 s26, s26, {WOF}")
    e(f"s_bitcmp1_b32 s22, 0\ns_mov_b32 s28, 4096\ns_cselect_b32 s28, {OOB:#x}, s28")
    e("s_mul_i32 s27, s20, 5120")
    e(f"s_mul_i32 s30, s21, {72*4096}\ns_lshl_b32 s31, s20, 10\ns_add_u32 s30, s30, s31\ns_add_u32 s30, s30, {HF}")
    def batch(slot):
        out = []
        for q in range(4):
            out.append(f"s_add_u32 s33, s30, {q*4096}\nbuffer_load_dwordx4 {vr(BF+slot*16+q*4,4)}, v1, s[40:43], s33 offen")
        for i in range(4):
            out.append(f"s_add_u32 m0, s27, {slot*G3_STAGE + i*1024}\ns_add_u32 s33, s26, {i*1024}\nbuffer_load_dwordx4 v1, s[40:43], s33 offen lds")
        out.append(f"s_add_u32 m0, s27, {slot*G3_STAGE + 4096}\ns_add_u32 s33, s26, s28\nbuffer_load_dwordx4 v1, s[40:43], s33 offen lds")
        return out
    adv = f"s_add_u32 s26, s26, {4*36864}\ns_add_u32 s30, s30, 16384"
    def ldsread(slot, ks, fb):
        off = slot * G3_STAGE + ks * 5120 + fb * 1024
        base = "v1"
        if off >= 40960:
            off -= 40960; base = "v4"
        return f"ds_read_b128 {vr(AF+fb*4,4)}, {base} offset:{off}"
    def mfma(fb, bslot, ks):
        acc = ACC + fb * 4
        return f"v_mfma_f32_16x16x32_bf16 {vr(acc,4)}, {vr(AF+fb*4,4)}, {vr(BF+bslot*16+ks*4,4)}, {vr(acc,4)}"
    e("v_lshrrev_b32 v5, 3, v3\nv_lshlrev_b32 v5, 12, v5\nv_and_b32 v6, 7, v3\nv_lshl_add_u32 v5, v6, 4, v5")
    e(f"s_lshl_b32 s34, s23, 16\ns_lshl_b32 s35, s21, 7\ns_add_u32 s34, s34, s35\ns_lshl_b32 s35, s20, 15\ns_add_u32 s34, s34, s35\ns_add_u32 s34, s34, {AT}")
    e("s_lshl_b32 s35, s20, 10")
    e(f"v_and_b32 v6, 15, v3\nv_lshlrev_b32 v6, 2, v6\ns_lshl_b32 s36, s21, 8\ns_lshl_b32 s37, s20, 6\ns_add_u32 s36, s36, s37\ns_add_u32 s36, s36, {GATE}")
    for s in range(3):
        for x in batch(s): e(x)
        e(adv)
    for i in range(20): e(f"v_mov_b32 v{ACC+i}, 0")
    e("s_waitcnt vmcnt(18)\ns_barrier")
    for fb in range(5): e(ldsread(0, 0, fb))
    for ks in range(3):
        for fb in range(5):
            e("s_waitcnt lgkmcnt(4)")
            e(mfma(fb, 0, ks))
            e(ldsread(0, ks + 1, fb))
    e("s_mov_b32 s38, 0")
    def body(u, issue, wait, tail=False, extra=None):
        nxt = (u + 1) % 4
        if not tail: e(f"s_waitcnt vmcnt({wait})\ns_barrier")
        o = batch((u + 3) % 4) if issue else list(extra or [])
        seq = [(u, 3, nxt, 0)] + [(nxt, ks, nxt, ks + 1) for ks in range(3)]
        if tail: seq = seq[:1]
        for (bs, ks, rs, rk) in seq:
            for fb in range(5):
                e(f"s_waitcnt lgkmcnt({4 - fb if tail else 4})")
                e(mfma(fb, bs, ks))
                if not tail: e(ldsread(rs, rk, fb))
                if o and fb % 2 == 0: e(o.pop(0))
        for x in o: e(x)
        if issue: e(adv)
    a.label("L_g3_loop")
    for u in range(4): body(u, True, 9)
    e("s_add_u32 s38, s38, 1\ns_cmp_lt_u32 s38, 3\ns_cbranch_scc1 L_g3_loop")
    for u in range(3): body(u, True, 9)
    ex = [f"s_add_u32 m0, s35, {G3_ATB + i*4096}\ns_add_u32 s33, s34, {i*32*4096}\nbuffer_load_dwordx4 v5, s[40:43], s33 offen lds" for i in range(3)]
    ex.append("buffer_load_dword v7, v6, s[40:43], s36 offen")
    body(3, False, 9, extra=ex)
    body(0, False, 4)
    body(1, False, 0, tail=True)
    e("s_waitcnt vmcnt(0)\ns_barrier")
    e("v_lshrrev_b32 v8, 4, v3\nv_lshlrev_b32 v8, 2, v8\nv_bfe_u32 v9, v3, 2, 2\nv_add_u32 v8, v8, v9\nv_lshlrev_b32 v8, 7, v8\nv_and_b32 v9, 3, v3\nv_lshl_add_u32 v8, v9, 3, v8")
    e(f"s_lshl_b32 s33, s20, 5\ns_add_u32 s33, s33, {G3_ATB}\nv_add_u32 v8, s33, v8")
    for fb in range(5): e(f"ds_read_b64_tr_b16 {vr(BF+2*fb,2)}, v8 offset:{fb*2048}")
    e("v_and_b32 v9, 15, v3\nv_mul_u32_u24 v9, 1152, v9\nv_lshrrev_b32 v10, 4, v3\nv_lshl_add_u32 v9, v10, 3, v9")
    e("s_lshl_b32 s33, s21, 2\ns_add_u32 s33, s33, s20\ns_mul_i32 s33, s33, 18432\ns_lshl_b32 s39, s23, 5\ns_add_u32 s33, s33, s39")
    e("v_sub_f32 v10, 1.0, v7\nv_cvt_pk_bf16_f32 v10, v10, v10\nv_and_b32 v10, 0xffff0000, v10")
    e("s_waitcnt lgkmcnt(0)")
    T = BF + 16
    for fb in range(5):
        if fb == 4: e("s_bitcmp1_b32 s22, 0\ns_cbranch_scc1 L_g3_done")
        t = T + fb * 8; z = BF + 2 * fb; acc = ACC + fb * 4
        e(f"v_lshlrev_b32 v{t}, 16, v{z}\nv_and_b32 v{t+1}, 0xffff0000, v{z}\nv_lshlrev_b32 v{t+2}, 16, v{z+1}\nv_and_b32 v{t+3}, 0xffff0000, v{z+1}")
        for i in range(4): e(f"v_mul_f32 v{t+i}, v{t+i}, v7")
        for i in range(4): e(f"v_fma_f32 v{t+i}, v{acc+i}, v10, v{t+i}")
        e(f"v_cvt_pk_bf16_f32 v{t+4}, v{t}, v{t+1}\nv_cvt_pk_bf16_f32 v{t+5}, v{t+2}, v{t+3}")
        e(f"buffer_store_dwordx2 {vr(t+4,2)}, v9, s[44:47], s33 offen offset:{fb*32}")
    a.label("L_g3_done")
    e("s_endpgm")
```

```python
from common import *
import math
PREP_NP = 256; PREP_NO = 72; PREP_NU = 64; PREP_NK = 576
PREP_GRID = PREP_NP + PREP_NO + PREP_NU + PREP_NK
PREP_LDS = 40960
PREP_VGPR = 128

def xreduce(e, v, t, op="v_add_f32"):
    e(f"v_mov_b32 v{t}, v{v}\ns_nop 1\nv_permlane32_swap_b32 v{v}, v{t}\ns_nop 1\n{op} v{v}, v{v}, v{t}")
    e(f"v_mov_b32 v{t}, v{v}\ns_nop 1\nv_permlane16_swap_b32 v{v}, v{t}\ns_nop 1\n{op} v{v}, v{v}, v{t}")

def bf16round(e, v, t=None):
    e(f"v_cvt_pk_bf16_f32 v{v}, v{v}, v{v}\nv_and_b32 v{v}, 0xffff0000, v{v}")

def gen_role_P(a):
    e = a.e
    a.label("L_prep_P")
    e("s_load_dwordx2 s[4:5], s[0:1], 72")
    e("s_and_b32 s21, s2, 15\ns_lshr_b32 s22, s2, 4")
    for q in range(4):
        e(f"v_lshrrev_b32 v4, 4, v3\nv_add_u32 v4, {4*q}, v4\nv_and_b32 v5, 15, v3\nv_xor_b32 v5, v5, v4\nv_lshlrev_b32 v4, 12, v4\nv_lshl_add_u32 v{8+q}, v5, 4, v4")
    e("s_waitcnt lgkmcnt(0)")
    srd(e, 32, 4, 8388608)
    e("s_lshl_b32 s23, s22, 19\ns_lshl_b32 s24, s20, 17\ns_add_u32 s23, s23, s24\ns_lshl_b32 s24, s21, 8\ns_add_u32 s23, s23, s24")
    e("s_lshl_b32 s25, s20, 13")
    e(f"s_lshl_b32 s26, s20, 16\ns_lshl_b32 s27, s21, 10\ns_add_u32 s26, s26, s27\ns_add_u32 s26, s26, {STAT}")
    for i in range(4):
        e(f"s_add_u32 s27, s26, {i*16384}\nbuffer_load_dwordx4 {vr(16+4*i,4)}, v1, s[40:43], s27 offen")
    for p in range(8):
        e(f"s_add_u32 m0, s25, {p*1024}\ns_add_u32 s27, s23, {(p>>2)*16*4096}\nbuffer_load_dwordx4 v{8+(p&3)}, s[32:35], s27 offen lds")
    e("s_waitcnt vmcnt(8)")
    for i in range(4): e(f"v_add_f32 v{16+i}, v{16+i}, v{20+i}\nv_add_f32 v{24+i}, v{24+i}, v{28+i}")
    for i in range(4): e(f"v_add_f32 v{16+i}, v{16+i}, v{24+i}")
    e("s_lshl_b32 s27, s20, 10\nv_add_u32 v4, s27, v1")
    e("ds_write_b128 v4, v[16:19] offset:32768")
    e("s_waitcnt lgkmcnt(0)\ns_barrier")
    for i in range(4): e(f"ds_read_b128 {vr(16+4*i,4)}, v1 offset:{32768+i*1024}")
    e("s_waitcnt lgkmcnt(0)")
    for i in range(4): e(f"v_add_f32 v{16+i}, v{16+i}, v{20+i}\nv_add_f32 v{24+i}, v{24+i}, v{28+i}")
    for i in range(4): e(f"v_add_f32 v{16+i}, v{16+i}, v{24+i}")
    e("s_nop 1")
    for i in range(4): e(f"v_mov_b32_dpp v{20+i}, v{16+i} quad_perm:[2,3,0,1] row_mask:0xf bank_mask:0xf")
    e(f"s_mov_b32 s28, {f32(1.0/2304)}\ns_mov_b32 s29, {f32(1e-5)}")
    for i in range(4): e(f"v_mul_f32 v{16+i}, s28, v{16+i}")
    for i in range(4): e(f"v_mul_f32 v{20+i}, s28, v{20+i}")
    for i in range(4): e(f"v_fma_f32 v{20+i}, -v{16+i}, v{16+i}, v{20+i}")
    for i in range(4): e(f"v_max_f32 v{20+i}, 0, v{20+i}")
    for i in range(4): e(f"v_add_f32 v{20+i}, s29, v{20+i}")
    for i in range(4): e(f"v_rsq_f32 v{20+i}, v{20+i}")
    e("v_cvt_pk_bf16_f32 v24, v16, v17\nv_cvt_pk_bf16_f32 v25, v18, v19")
    e("v_lshlrev_b32 v28, 16, v24\nv_and_b32 v29, 0xffff0000, v24\nv_lshlrev_b32 v30, 16, v25\nv_and_b32 v31, 0xffff0000, v25")
    for i in range(4): e(f"v_sub_f32 v{28+i}, v{16+i}, v{28+i}")
    e("v_cvt_pk_bf16_f32 v26, v28, v29\nv_cvt_pk_bf16_f32 v27, v30, v31")
    e("v_lshrrev_b32 v4, 2, v3\nv_lshlrev_b32 v4, 1, v4\nv_and_b32 v5, 1, v3\nv_add_u32 v4, v4, v5")
    e("v_lshlrev_b32 v5, 4, v4\nv_add_u32 v5, s27, v5")
    e("v_lshlrev_b32 v6, 3, v4\nv_add_u32 v6, s27, v6")
    e("v_and_b32 v7, 2, v3\nv_cmp_eq_u32 vcc, 0, v7\ns_and_saveexec_b64 s[30:31], vcc")
    e("ds_write_b128 v5, v[20:23] offset:36864\nds_write_b64 v6, v[24:25] offset:37376\nds_write_b64 v6, v[26:27] offset:37632")
    e("s_mov_b64 exec, s[30:31]")
    e("v_lshrrev_b32 v4, 4, v3")
    e("v_lshlrev_b32 v5, 5, v4\nv_add_u32 v5, s27, v5")
    e("v_lshlrev_b32 v6, 4, v4\nv_add_u32 v6, s27, v6")
    e("v_and_b32 v7, 15, v3\nv_xor_b32 v4, v4, v7\nv_lshlrev_b32 v7, 8, v7\nv_lshl_add_u32 v7, v4, 4, v7\nv_add_u32 v7, s25, v7")
    e(f"s_lshl_b32 s28, s22, 2\ns_add_u32 s28, s28, s20\ns_lshl_b32 s28, s28, 6\ns_lshl_b32 s29, s21, 2\ns_add_u32 s28, s28, s29\ns_lshl_b32 s28, s28, 11\ns_add_u32 s28, s28, {WPF}")
    e("v_mov_b32 v12, 0\nv_mov_b32 v13, 0")
    e("s_waitcnt vmcnt(0) lgkmcnt(0)")
    for kc in range(4):
        R = 16; MH = 24; ML = 28; W = 32 + (kc % 2) * 32
        e(f"ds_read_b128 {vr(R,4)}, v5 offset:{36864+kc*128}\nds_read_b128 {vr(R+4,4)}, v5 offset:{36864+kc*128+16}")
        e(f"ds_read_b128 {vr(MH,4)}, v6 offset:{37376+kc*64}\nds_read_b128 {vr(ML,4)}, v6 offset:{37632+kc*64}")
        e(f"v_xor_b32 v14, {kc*64}, v7")
        e(f"ds_read_b128 {vr(W,4)}, v14\nds_read_b128 {vr(W+4,4)}, v14 offset:4096")
        e("s_waitcnt lgkmcnt(0)")
        for j in range(2):
            T = W + 8 + j * 8; P = W + 24 + j * 4
            for q in range(4):
                e(f"v_lshlrev_b32 v{T+2*q}, 16, v{W+4*j+q}\nv_and_b32 v{T+2*q+1}, 0xffff0000, v{W+4*j+q}")
            for q in range(8): e(f"v_mul_f32 v{T+q}, v{T+q}, v{R+q}")
            for q in range(4): e(f"v_cvt_pk_bf16_f32 v{P+q}, v{T+2*q}, v{T+2*q+1}")
            e(f"s_add_u32 s29, s28, {(kc*2+j)*1024}")
            e(f"buffer_store_dwordx4 {vr(P,4)}, v1, s[40:43], s29 offen")
            for q in range(4): e(f"v_dot2_f32_bf16 v{12+j}, v{P+q}, v{MH+q}, v{12+j}")
            for q in range(4): e(f"v_dot2_f32_bf16 v{12+j}, v{P+q}, v{ML+q}, v{12+j}")
        e("s_nop 3")
    e("s_nop 3")
    xreduce(e, 12, 14); xreduce(e, 13, 14)
    e(f"s_lshl_b32 s28, s22, 2\ns_add_u32 s28, s28, s20\ns_lshl_b32 s28, s28, 11\ns_lshl_b32 s29, s21, 2\ns_add_u32 s28, s28, s29\ns_add_u32 s28, s28, {CPART}")
    e("v_lshlrev_b32 v4, 6, v3\nv_cmp_gt_u32 vcc, 16, v3\ns_and_saveexec_b64 s[30:31], vcc")
    e("buffer_store_dword v12, v4, s[40:43], s28 offen\nbuffer_store_dword v13, v4, s[40:43], s28 offen offset:1024")
    e("s_endpgm")

def tile36k_dma(e, srd_s, sbase):
    e(f"s_mul_i32 s25, s20, 9216\ns_add_u32 s26, s{sbase}, s25")
    for p in range(9):
        e(f"s_add_u32 m0, s25, {p*1024}\ns_add_u32 s27, s26, {p*1024}\nbuffer_load_dwordx4 v1, s[{srd_s}:{srd_s+3}], s27 offen lds")

def gen_role_O(a):
    e = a.e
    a.label("L_prep_O")
    e(f"s_sub_u32 s21, s2, {PREP_NP}")
    e("s_load_dwordx2 s[4:5], s[0:1], 88")
    e("s_mul_i32 s22, s21, 36864")
    e("s_waitcnt lgkmcnt(0)")
    srd(e, 32, 4, 2654208)
    tile36k_dma(e, 32, 22)
    e("v_lshrrev_b32 v4, 4, v3\nv_lshlrev_b32 v4, 2, v4\nv_bfe_u32 v5, v3, 2, 2\nv_add_u32 v4, v4, v5\nv_mul_u32_u24 v4, 1152, v4")
    e("v_and_b32 v5, 3, v3\nv_lshl_add_u32 v4, v5, 3, v4\ns_mul_i32 s27, s20, 288\nv_add_u32 v4, s27, v4")
    e(f"s_add_u32 s28, s26, {WOF}")
    e("s_waitcnt vmcnt(0)\ns_barrier")
    for db in range(9):
        e(f"ds_read_b64_tr_b16 {vr(16+db*4,2)}, v4 offset:{db*32}\nds_read_b64_tr_b16 {vr(18+db*4,2)}, v4 offset:{18432+db*32}")
    for db in range(9):
        e(f"s_waitcnt lgkmcnt({min(15, 16-2*db)})")
        e(f"s_add_u32 s27, s28, {db*1024}\nbuffer_store_dwordx4 {vr(16+db*4,4)}, v1, s[40:43], s27 offen")
    e("s_endpgm")

def gen_role_U(a):
    e = a.e
    a.label("L_prep_U")
    e(f"s_sub_u32 s21, s2, {PREP_NP+PREP_NO}")
    e("s_load_dwordx2 s[4:5], s[0:1], 0")
    e("s_load_dwordx2 s[6:7], s[0:1], 96")
    e("s_mul_i32 s22, s21, 36864")
    e("s_waitcnt lgkmcnt(0)")
    srd(e, 32, 4, 2359296)
    srd(e, 36, 6, 1152)
    tile36k_dma(e, 32, 22)
    e("v_and_b32 v5, 7, v3\nv_lshlrev_b32 v5, 4, v5")
    for i in range(9): e(f"buffer_load_dwordx4 {vr(56+4*i,4)}, v5, s[36:39], 0 offen offset:{i*128}")
    e("v_lshrrev_b32 v4, 4, v3\nv_lshlrev_b32 v4, 3, v4\nv_bfe_u32 v6, v3, 2, 2\nv_sub_u32 v4, v4, v6\nv_add_u32 v4, 3, v4\nv_mul_u32_u24 v4, 1152, v4")
    e("v_and_b32 v6, 3, v3\nv_lshl_add_u32 v4, v6, 3, v4\ns_mul_i32 s27, s20, 288\nv_add_u32 v4, s27, v4")
    e("v_and_b32 v6, 15, v3\nv_lshlrev_b32 v6, 12, v6\nv_lshrrev_b32 v7, 4, v3\nv_lshl_add_u32 v6, v7, 10, v6")
    e(f"s_mul_i32 s28, s20, {9*65536}\ns_lshl_b32 s27, s21, 4\ns_add_u32 s28, s28, s27\ns_add_u32 s28, s28, {VP}")
    e("s_waitcnt vmcnt(0)\ns_barrier")
    for db in range(9):
        e(f"ds_read_b64_tr_b16 {vr(16+db*4,2)}, v4 offset:{4608+db*32}\nds_read_b64_tr_b16 {vr(18+db*4,2)}, v4 offset:{db*32}")
    for db in range(9):
        e(f"s_waitcnt lgkmcnt({min(15, 16-2*db)})")
        e(f"s_add_u32 s27, s28, {db*65536}\nbuffer_store_dwordx4 {vr(16+db*4,4)}, v6, s[40:43], s27 offen")
    e("v_lshrrev_b32 v7, 3, v3\ns_lshl_b32 s27, s20, 3\nv_add_u32 v7, s27, v7\nv_mul_u32_u24 v8, 1152, v7\nv_add_u32 v8, v8, v5")
    e("v_mov_b32 v9, 0\nv_mov_b32 v10, 0")
    X = 92
    for i in range(9):
        e(f"ds_read_b128 {vr(X,4)}, v8 offset:{i*128}")
        e("s_waitcnt lgkmcnt(0)")
        for q in range(4):
            g = 56 + 4 * i + q
            e(f"v_lshlrev_b32 v{X+4+2*q}, 16, v{X+q}\nv_and_b32 v{X+5+2*q}, 0xffff0000, v{X+q}")
            e(f"v_lshlrev_b32 v{X+12+2*q}, 16, v{g}\nv_and_b32 v{X+13+2*q}, 0xffff0000, v{g}")
        for q in range(8): e(f"v_mul_f32 v{X+4+q}, v{X+4+q}, v{X+12+q}")
        for q in range(4): e(f"v_cvt_pk_bf16_f32 v{X+q}, v{X+4+2*q}, v{X+5+2*q}")
        for q in range(4):
            e(f"v_lshlrev_b32 v{X+4+2*q}, 16, v{X+q}\nv_and_b32 v{X+5+2*q}, 0xffff0000, v{X+q}")
        for q in range(4):
            e(f"v_add_f32 v9, v9, v{X+4+2*q}\nv_add_f32 v10, v10, v{X+5+2*q}")
    e("v_add_f32 v9, v9, v10\ns_nop 1")
    e("v_add_f32_dpp v9, v9, v9 quad_perm:[1,0,3,2] row_mask:0xf bank_mask:0xf\ns_nop 1")
    e("v_add_f32_dpp v9, v9, v9 quad_perm:[2,3,0,1] row_mask:0xf bank_mask:0xf\ns_nop 1")
    e("v_add_f32_dpp v9, v9, v9 row_half_mirror row_mask:0xf bank_mask:0xf\ns_nop 1")
    bf16round(e, 9)
    e(f"v_mul_f32 v9, {f32(-1.4426950408889634)}, v9\nv_exp_f32 v9, v9\ns_nop 0\nv_add_f32 v9, 1.0, v9\nv_rcp_f32 v9, v9\ns_nop 0")
    bf16round(e, 9)
    e(f"s_lshl_b32 s27, s21, 7\ns_add_u32 s27, s27, {GATE}\nv_lshlrev_b32 v7, 2, v7")
    e("v_cmp_eq_u32 vcc, 0, v5\ns_and_saveexec_b64 s[30:31], vcc")
    e("buffer_store_dword v9, v7, s[40:43], s27 offen")
    e("s_endpgm")

def gen_role_K(a):
    e = a.e
    a.label("L_prep_K")
    e(f"s_sub_u32 s21, s2, {PREP_NP+PREP_NO+PREP_NU}")
    e("s_load_dwordx4 s[4:7], s[0:1], 8")
    e("s_load_dwordx4 s[8:11], s[0:1], 24")
    e("s_load_dwordx4 s[12:15], s[0:1], 40")
    e("v_mov_b32 v16, 0\nv_mov_b32 v17, 0\nv_mov_b32 v18, 0\nv_mov_b32 v19, 0\nv_lshlrev_b32 v4, 4, v0")
    for i in range(3): e(f"ds_write_b128 v4, v[16:19] offset:{i*4096}")
    e("s_lshl_b32 s22, s21, 8")
    e("s_lshl_b32 s23, s21, 1")
    e("s_waitcnt lgkmcnt(0)")
    srd(e, 44, 4, 147456); srd(e, 48, 6, 147456); srd(e, 52, 8, 147456); srd(e, 56, 10, 147456)
    srd(e, 60, 12, 1152); srd(e, 64, 14, 1152)
    e("v_and_b32 v5, 31, v3\ns_lshl_b32 s24, s20, 5\nv_add_u32 v5, s24, v5\nv_lshlrev_b32 v5, 1, v5")
    e("v_lshlrev_b32 v6, 2, v3\nv_mov_b32 v7, 0")
    e("buffer_load_ushort v16, v5, s[44:47], s22 offen")
    e("buffer_load_ushort v17, v5, s[48:51], s22 offen")
    e("buffer_load_ushort v18, v5, s[52:55], s22 offen")
    e("buffer_load_ushort v19, v5, s[56:59], s22 offen")
    e("buffer_load_dword v20, v6, s[52:55], s22 offen")
    e("buffer_load_dword v21, v6, s[56:59], s22 offen")
    e("buffer_load_ushort v22, v7, s[60:63], s23 offen")
    e("buffer_load_ushort v23, v7, s[64:67], s23 offen")
    e("v_and_b32 v12, 15, v3")
    def prow(dst0, dst1, dst2, m, t1, t2):
        e(f"v_lshrrev_b32 v{t1}, 3, v{m}\nv_lshlrev_b32 v{t1}, 7, v{t1}\nv_and_b32 v{t2}, 7, v{m}\nv_add_u32 v{dst0}, v{t1}, v{t2}")
        e(f"v_lshrrev_b32 v{t1}, 2, v{m}\nv_lshlrev_b32 v{t1}, 7, v{t1}\nv_and_b32 v{t2}, 3, v{m}\nv_lshl_add_u32 v{t1}, v{t2}, 1, v{t1}\nv_add_u32 v{dst1}, 256, v{t1}")
        e(f"v_lshrrev_b32 v{t1}, 1, v{m}\nv_lshlrev_b32 v{t1}, 7, v{t1}\nv_and_b32 v{t2}, 1, v{m}\nv_lshl_add_u32 v{t1}, v{t2}, 2, v{t1}")
        e(f"v_cmp_gt_u32 vcc, 8, v{m}\ns_nop 1\nv_cndmask_b32 v{dst1}, v{t1}, v{dst1}, vcc")
        e(f"v_min_u32 v{t1}, 9, v{m}\nv_lshlrev_b32 v{t1}, 7, v{t1}\nv_add_u32 v{dst2}, 1024, v{t1}")
    e("v_lshlrev_b32 v8, 3, v12")
    prow(9, 10, 11, 12, 13, 14)
    for r in (8, 9, 10, 11): e(f"v_cvt_f32_u32 v{r}, v{r}")
    e("s_waitcnt vmcnt(0)")
    e("v_lshlrev_b32 v24, 16, v20\nv_and_b32 v25, 0xffff0000, v20\nv_lshlrev_b32 v26, 16, v21\nv_and_b32 v27, 0xffff0000, v21")
    e("v_max3_f32 v24, |v24|, |v25|, |v26|\nv_max_f32 v24, v24, |v27|\ns_nop 1")
    for dpp in ("quad_perm:[1,0,3,2]", "quad_perm:[2,3,0,1]", "row_half_mirror", "row_mirror"):
        e(f"v_max_f32_dpp v24, v24, v24 {dpp} row_mask:0xf bank_mask:0xf\ns_nop 1")
    xreduce(e, 24, 25, "v_max_f32")
    e("v_lshrrev_b32 v24, 23, v24\nv_max_u32 v24, 2, v24\nv_min_u32 v24, 252, v24")
    e("v_sub_u32 v25, 254, v24\nv_lshlrev_b32 v25, 23, v25")
    e("v_lshlrev_b32 v24, 23, v24")
    for r in (16, 17, 18, 19, 22, 23): e(f"v_lshlrev_b32 v{r}, 16, v{r}")
    LOG2E = 1.4426950408889634
    e(f"v_mul_f32 v22, {f32(LOG2E)}, v22\nv_mul_f32 v16, {f32(LOG2E)}, v16\nv_exp_f32 v22, v22\nv_exp_f32 v16, v16\ns_nop 0")
    bf16round(e, 22); bf16round(e, 16)
    e("v_mul_f32 v16, v16, v22\nv_mul_f32 v17, v17, v22")
    e(f"v_mul_f32 v16, {f32(-LOG2E)}, v16")
    import numpy as np
    c = 1.0 / (2 * math.pi)
    c_hi = float(np.float32(c)); c_lo = float(np.float32(c - c_hi))
    e(f"s_mov_b32 s25, {f32(c_hi)}\ns_mov_b32 s26, {f32(c_lo)}")
    e("v_mul_f32 v26, s25, v17\nv_and_b32 v26, 0xffffff00, v26")
    e("v_fma_f32 v27, v17, s25, -v26\nv_fma_f32 v27, v17, s26, v27")
    e("v_mul_f32 v18, v18, v25\nv_mul_f32 v19, v19, v25")
    e("v_mul_f32 v24, v24, v22\nv_add_f32 v24, v24, v24")
    e("v_and_b32 v5, 31, v3\nv_lshlrev_b32 v5, 2, v5\ns_lshl_b32 s24, s20, 10\nv_add_u32 v5, s24, v5")
    for k, r in enumerate((26, 27, 16, 18, 19)): e(f"ds_write_b32 v5, v{r} offset:{12288+k*128}")
    e("v_lshrrev_b32 v6, 4, v3\nv_lshlrev_b32 v6, 4, v6\nv_add_u32 v6, s24, v6")
    ACC = 28; TB = 40; FR = 60; T = 76
    for i in range(12): e(f"v_mov_b32 v{ACC+i}, 0")
    e("s_waitcnt lgkmcnt(0)")
    for ks in range(2):
        for k in range(5): e(f"ds_read_b128 {vr(TB+4*k,4)}, v6 offset:{12288+k*128+ks*64}")
        e("s_waitcnt lgkmcnt(0)")
        for blk in range(4):
            P = 8 + blk
            for q in range(4): e(f"v_mul_f32 v{T+q}, v{TB+q}, v{P}")
            for q in range(4): e(f"v_mul_f32 v{T+4+q}, v{TB+8+q}, v{P}")
            for q in range(4): e(f"v_fract_f32 v{T+q}, v{T+q}")
            for q in range(4): e(f"v_exp_f32 v{T+4+q}, v{T+4+q}")
            for q in range(4): e(f"v_fma_f32 v{T+q}, v{TB+4+q}, v{P}, v{T+q}")
            for q in range(4): e(f"v_cos_f32 v{T+8+q}, v{T+q}")
            for q in range(4): e(f"v_sin_f32 v{T+q}, v{T+q}")
            for q in range(4): e(f"v_mul_f32 v{T+8+q}, v{T+8+q}, v{T+4+q}")
            for q in range(4): e(f"v_mul_f32 v{T+q}, v{T+q}, v{T+4+q}")
            if blk == 0:
                for q in range(4): e(f"v_mul_f32 v{T+4+q}, v{TB+12+q}, v{T+8+q}")
                for q in range(4): e(f"v_mul_f32 v{T+12+q}, v{TB+12+q}, v{T+q}")
                for q in range(4): e(f"v_fma_f32 v{T+4+q}, -v{TB+16+q}, v{T+q}, v{T+4+q}")
                for q in range(4): e(f"v_fma_f32 v{T+12+q}, v{TB+16+q}, v{T+8+q}, v{T+12+q}")
                for q in range(4): e(f"v_cvt_pk_f16_f32 v{FR+q}, v{T+4+q}, -v{T+12+q}")
            else:
                for q in range(4): e(f"v_cvt_pk_f16_f32 v{FR+4*blk+q}, v{T+8+q}, v{T+q}")
        e("s_nop 1")
        for blk in range(3):
            e(f"v_mfma_f32_16x16x32_f16 {vr(ACC+4*blk,4)}, {vr(FR+4+4*blk,4)}, {vr(FR,4)}, {vr(ACC+4*blk,4)}")
    e("v_lshrrev_b32 v13, 4, v3\nv_lshlrev_b32 v13, 2, v13\nv_lshlrev_b32 v14, 3, v12")
    for i in range(4):
        e(f"v_add_u32 v15, {i}, v13")
        prow(TB + i, TB + 4 + i, TB + 8 + i, 15, TB + 12, TB + 13)
    for i in range(12): e(f"v_add_lshl_u32 v{TB+i}, v{TB+i}, v14, 2")
    e("s_barrier")
    for i in range(12): e(f"ds_add_f32 v{TB+i}, v{ACC+i}")
    e("v_lshlrev_b32 v13, 3, v0")
    for q in range(8): e(f"v_add_u32 v{T+q}, {q}, v13")
    for q in range(8): e(f"v_cvt_f32_u32 v{T+q}, v{T+q}")
    for q in range(4): e(f"v_cvt_pk_bf16_f32 v{T+8+q}, v{T+2*q}, v{T+2*q+1}")
    for q in range(4): e(f"v_lshlrev_b32 v{T+2*q}, 16, v{T+8+q}\nv_and_b32 v{T+2*q+1}, 0xffff0000, v{T+8+q}")
    for q in range(8): e(f"v_cvt_u32_f32 v{T+q}, v{T+q}")
    for q in range(8): e(f"v_lshlrev_b32 v{T+q}, 2, v{T+q}")
    e("s_waitcnt lgkmcnt(0)\ns_barrier")
    for q in range(8): e(f"ds_read_b32 v{T+8+q}, v{T+q}")
    e("v_cmp_eq_u32 vcc, 0, v0\ns_nop 1\nv_cndmask_b32 v23, 0, v23, vcc")
    e(f"s_mul_i32 s24, s21, {KX_PITCH}\ns_add_u32 s24, s24, {KX}")
    e("s_waitcnt lgkmcnt(0)")
    e(f"v_fma_f32 v{T+8}, v{T+8}, v24, v23")
    for q in range(1, 8): e(f"v_mul_f32 v{T+8+q}, v{T+8+q}, v24")
    for q in range(4): e(f"v_cvt_pk_bf16_f32 v{T+q}, v{T+8+2*q}, v{T+9+2*q}")
    e(f"buffer_store_dwordx4 {vr(T,4)}, v4, s[40:43], s24 offen offset:128")
    e("v_mov_b32 v16, 0\nv_mov_b32 v17, 0\nv_mov_b32 v18, 0\nv_mov_b32 v19, 0")
    e("v_cmp_gt_u32 vcc, 8, v0\ns_and_saveexec_b64 s[30:31], vcc\ns_cbranch_execz L_prep_done")
    e("buffer_store_dwordx4 v[16:19], v4, s[40:43], s24 offen")
    e("s_endpgm")

def gen_prep(a):
    e = a.e
    kernel_head(a, "prep_kernel")
    e(f"s_cmp_ge_u32 s2, {PREP_GRID}\ns_cbranch_scc1 L_prep_done")
    e("s_load_dwordx2 s[16:17], s[0:1], 120")
    e("v_lshrrev_b32 v2, 6, v0\nv_and_b32 v3, 63, v0\nv_lshlrev_b32 v1, 4, v3")
    e("v_readfirstlane_b32 s20, v2")
    e("s_waitcnt lgkmcnt(0)")
    srd(e, 40, 16, WS_SIZE)
    e(f"s_cmp_lt_u32 s2, {PREP_NP}\ns_cbranch_scc1 L_prep_P")
    e(f"s_cmp_lt_u32 s2, {PREP_NP+PREP_NO}\ns_cbranch_scc1 L_prep_O")
    e(f"s_cmp_lt_u32 s2, {PREP_NP+PREP_NO+PREP_NU}\ns_cbranch_scc1 L_prep_U")
    e("s_branch L_prep_K")
    gen_role_P(a); gen_role_O(a); gen_role_U(a); gen_role_K(a)
    a.label("L_prep_done")
    e("s_endpgm")
```

```python
import sys
from common import *
import g1, prep, g2, g3
def build():
    a = Asm()
    g1.gen_g1(a); prep.gen_prep(a); g2.gen_g2(a); g3.gen_g3(a)
    ref = open("gated_mix__ssm_conv_s4d__mixer_gmlp__prompt.s.ref").read().split("\n")
    head = [l for l in ref if l.startswith(";") and "@launch" not in l and "Override" not in l and "grid=ceil" not in l]
    head = head[:18]
    head += [
        f"; @launch kernel=g1_kernel grid=(256,1,1) block=(512,1,1) lds={g1.G1_LDS}",
        f"; @launch kernel=prep_kernel grid=({prep.PREP_GRID},1,1) block=(256,1,1) lds={prep.PREP_LDS}",
        f"; @launch kernel=g2_kernel grid=({g2.G2_GRID},1,1) block=(256,1,1) lds={g2.G2_LDS}",
        f"; @launch kernel=g3_kernel grid=(256,1,1) block=(256,1,1) lds={g3.G3_LDS}",
    ]
    s = "\n".join(head) + '\n.amdgcn_target "amdgcn-amd-amdhsa--gfx950"\n.text\n' + a.text()
    s += '.section .rodata,"a"\n'
    s += kernel_desc("g1_kernel", g1.G1_VGPR) + kernel_desc("prep_kernel", prep.PREP_VGPR) + kernel_desc("g2_kernel", g2.G2_VGPR) + kernel_desc("g3_kernel", g3.G3_VGPR)
    return s
if __name__ == "__main__":
    out = sys.argv[1] if len(sys.argv) > 1 else "gated_mix__ssm_conv_s4d__mixer_gmlp__prompt.s"
    open(out, "w").write(build())
```

```python
from asmlib import *
import struct
Z2F = 0x0000000
Z1F = 0x0900000
WPF = 0x1200000
HF  = 0x1A00000
WOF = 0x2300000
STAT = 0x2600000
CPART = 0x2640000
GATE = 0x2660000
FLAGS = 0x2670000
KX = 0x2680000
KX_PITCH = 4224
VP = 0x2900000
AT = 0x2B80000
import os as _os
_B = int(_os.environ.get("WSBASE", "0"), 0)
Z2F += _B; Z1F += _B; WPF += _B; HF += _B; WOF += _B; STAT += _B; CPART += _B; GATE += _B; KX += _B; VP += _B; AT += _B
WS_SIZE = 0x10000000
OOB = 0x40000000

def f32(x):
    return "0x%08x" % struct.unpack("<I", struct.pack("<f", x))[0]

class VM:
    def __init__(self):
        self.ops = []
    def issue(self, tag):
        self.ops.append(tag)
    def need(self, tags):
        last = -1
        for i, t in enumerate(self.ops):
            if t in tags:
                last = i
        return min(63, len(self.ops) - 1 - last)

def srd(e, s, ptr_s, nbytes):
    e(f"s_mov_b32 s{s}, s{ptr_s}\ns_mov_b32 s{s+1}, s{ptr_s+1}\ns_mov_b32 s{s+2}, {nbytes:#x}\ns_mov_b32 s{s+3}, 0x00020000")

def tile_ids(e, sf, st, t0, t1):
    e(f"s_and_b32 s{t0}, s2, 7\ns_lshr_b32 s{t1}, s2, 3")
    e(f"s_and_b32 s{sf}, s{t0}, 3\ns_lshl_b32 s{sf}, s{sf}, 2\ns_and_b32 s{st}, s{t1}, 3\ns_add_u32 s{sf}, s{sf}, s{st}")
    e(f"s_lshr_b32 s{st}, s{t0}, 2\ns_lshl_b32 s{st}, s{st}, 3\ns_lshr_b32 s{t1}, s{t1}, 2\ns_add_u32 s{st}, s{st}, s{t1}")

import os
STAMPS = os.environ.get("STAMPS", "")
class Stamper:
    def __init__(self, e, name):
        self.e = e; self.on = (name in STAMPS.split(",")); self.n = 0
    def __call__(self):
        if not self.on: return
        r = 70 + 2 * self.n; self.n += 1
        assert r < 97
        self.e(f"s_memtime s[98:99]\ns_memrealtime s[{r}:{r+1}]\ns_waitcnt lgkmcnt(0)\ns_mov_b32 s{r+1}, s98")
    def dump(self, srd=40, wave_s=20, vt=(2, 3)):
        if not self.on: return
        e = self.e
        e("s_mov_b64 exec, 1")
        e(f"s_lshl_b32 s100, s2, 3\ns_add_u32 s100, s100, s{wave_s}\ns_lshl_b32 s100, s100, 7\ns_add_u32 s100, s100, 0x3000000")
        e(f"v_mov_b32 v{vt[0]}, 0")
        for i in range(self.n):
            e(f"v_mov_b32 v{vt[1]}, s{70+2*i}\nbuffer_store_dword v{vt[1]}, v{vt[0]}, s[{srd}:{srd+3}], s100 offen offset:{4*i}\ns_nop 1")
            e(f"v_mov_b32 v{vt[1]}, s{71+2*i}\nbuffer_store_dword v{vt[1]}, v{vt[0]}, s[{srd}:{srd+3}], s100 offen offset:{64+4*i}\ns_nop 1")
        e("s_waitcnt vmcnt(0)")
```

```python
from common import *
G3_RING = 4
G3_STAGE = 20480
G3_ATB = G3_RING * G3_STAGE
G3_LDS = G3_ATB + 12288
G3_VGPR = 128

def gen_g3(a):
    e = a.e
    kernel_head(a, "g3_kernel")
    ACC = 16; AF = 36; BF = 56
    e("s_cmp_ge_u32 s2, 256\ns_cbranch_scc1 L_g3_done")
    st = Stamper(e, "G3"); st()
    e("s_load_dwordx2 s[4:5], s[0:1], 120")
    e("s_load_dwordx2 s[6:7], s[0:1], 104")
    e("v_lshrrev_b32 v2, 6, v0\nv_and_b32 v3, 63, v0\nv_lshlrev_b32 v1, 4, v3")
    e("v_readfirstlane_b32 s20, v2")
    e("v_add_u32 v4, 40960, v1")
    e("s_and_b32 s21, s2, 7\ns_lshr_b32 s22, s2, 3\ns_lshl_b32 s21, s21, 2\ns_and_b32 s23, s22, 3\ns_add_u32 s21, s21, s23\ns_lshr_b32 s22, s22, 2")
    e("s_mul_i32 s23, s22, 9\ns_add_u32 s23, s23, 1\ns_lshr_b32 s23, s23, 1")
    e("s_waitcnt lgkmcnt(0)")
    srd(e, 40, 4, WS_SIZE)
    srd(e, 44, 6, 2359296)
    e(f"s_mul_i32 s26, s20, 36864\ns_lshl_b32 s27, s23, 10\ns_add_u32 s26, s26, s27\ns_add_u32 s26, s26, {WOF}")
    e(f"s_bitcmp1_b32 s22, 0\ns_mov_b32 s28, 4096\ns_cselect_b32 s28, {OOB:#x}, s28")
    e("s_mul_i32 s27, s20, 5120")
    e(f"s_mul_i32 s30, s21, {72*4096}\ns_lshl_b32 s31, s20, 10\ns_add_u32 s30, s30, s31\ns_add_u32 s30, s30, {HF}")
    def batch(slot):
        out = []
        for q in range(4):
            out.append(f"s_add_u32 s33, s30, {q*4096}\nbuffer_load_dwordx4 {vr(BF+slot*16+q*4,4)}, v1, s[40:43], s33 offen")
        for i in range(4):
            out.append(f"s_add_u32 m0, s27, {slot*G3_STAGE + i*1024}\ns_add_u32 s33, s26, {i*1024}\nbuffer_load_dwordx4 v1, s[40:43], s33 offen lds")
        out.append(f"s_add_u32 m0, s27, {slot*G3_STAGE + 4096}\ns_add_u32 s33, s26, s28\nbuffer_load_dwordx4 v1, s[40:43], s33 offen lds")
        return out
    adv = f"s_add_u32 s26, s26, {4*36864}\ns_add_u32 s30, s30, 16384"
    def ldsread(slot, ks, fb):
        off = slot * G3_STAGE + ks * 5120 + fb * 1024
        base = "v1"
        if off >= 40960:
            off -= 40960; base = "v4"
        return f"ds_read_b128 {vr(AF+fb*4,4)}, {base} offset:{off}"
    def mfma(fb, bslot, ks):
        acc = ACC + fb * 4
        return f"v_mfma_f32_16x16x32_bf16 {vr(acc,4)}, {vr(AF+fb*4,4)}, {vr(BF+bslot*16+ks*4,4)}, {vr(acc,4)}"
    e("v_lshrrev_b32 v5, 3, v3\nv_lshlrev_b32 v5, 12, v5\nv_and_b32 v6, 7, v3\nv_lshl_add_u32 v5, v6, 4, v5")
    e(f"s_lshl_b32 s34, s23, 16\ns_lshl_b32 s35, s21, 7\ns_add_u32 s34, s34, s35\ns_lshl_b32 s35, s20, 15\ns_add_u32 s34, s34, s35\ns_add_u32 s34, s34, {AT}")
    e("s_lshl_b32 s35, s20, 10")
    e(f"v_and_b32 v6, 15, v3\nv_lshlrev_b32 v6, 2, v6\ns_lshl_b32 s36, s21, 8\ns_lshl_b32 s37, s20, 6\ns_add_u32 s36, s36, s37\ns_add_u32 s36, s36, {GATE}")
    for s in range(3):
        for x in batch(s): e(x)
        e(adv)
    for i in range(20): e(f"v_mov_b32 v{ACC+i}, 0")
    st()
    e("s_waitcnt vmcnt(18)\ns_barrier")
    st()
    for fb in range(5): e(ldsread(0, 0, fb))
    for ks in range(3):
        for fb in range(5):
            e("s_waitcnt lgkmcnt(4)")
            e(mfma(fb, 0, ks))
            e(ldsread(0, ks + 1, fb))
    e("s_mov_b32 s38, 0")
    def body(u, issue, wait, tail=False, extra=None):
        nxt = (u + 1) % 4
        if not tail: e(f"s_waitcnt vmcnt({wait})\ns_barrier")
        o = batch((u + 3) % 4) if issue else list(extra or [])
        seq = [(u, 3, nxt, 0)] + [(nxt, ks, nxt, ks + 1) for ks in range(3)]
        if tail: seq = seq[:1]
        for (bs, ks, rs, rk) in seq:
            for fb in range(5):
                e(f"s_waitcnt lgkmcnt({4 - fb if tail else 4})")
                e(mfma(fb, bs, ks))
                if not tail: e(ldsread(rs, rk, fb))
                if o and fb % 2 == 0: e(o.pop(0))
        for x in o: e(x)
        if issue: e(adv)
    a.label("L_g3_loop")
    for u in range(4): body(u, True, 9)
    e("s_add_u32 s38, s38, 1\ns_cmp_lt_u32 s38, 3\ns_cbranch_scc1 L_g3_loop")
    st()
    for u in range(3): body(u, True, 9)
    ex = [f"s_add_u32 m0, s35, {G3_ATB + i*4096}\ns_add_u32 s33, s34, {i*32*4096}\nbuffer_load_dwordx4 v5, s[40:43], s33 offen lds" for i in range(3)]
    ex.append("buffer_load_dword v7, v6, s[40:43], s36 offen")
    body(3, False, 9, extra=ex)
    body(0, False, 4)
    body(1, False, 0, tail=True)
    st()
    e("s_waitcnt vmcnt(0)\ns_barrier")
    e("v_lshrrev_b32 v8, 4, v3\nv_lshlrev_b32 v8, 2, v8\nv_bfe_u32 v9, v3, 2, 2\nv_add_u32 v8, v8, v9\nv_lshlrev_b32 v8, 7, v8\nv_and_b32 v9, 3, v3\nv_lshl_add_u32 v8, v9, 3, v8")
    e(f"s_lshl_b32 s33, s20, 5\ns_add_u32 s33, s33, {G3_ATB}\nv_add_u32 v8, s33, v8")
    for fb in range(5): e(f"ds_read_b64_tr_b16 {vr(BF+2*fb,2)}, v8 offset:{fb*2048}")
    e("v_and_b32 v9, 15, v3\nv_mul_u32_u24 v9, 1152, v9\nv_lshrrev_b32 v10, 4, v3\nv_lshl_add_u32 v9, v10, 3, v9")
    e("s_lshl_b32 s33, s21, 2\ns_add_u32 s33, s33, s20\ns_mul_i32 s33, s33, 18432\ns_lshl_b32 s39, s23, 5\ns_add_u32 s33, s33, s39")
    e("v_sub_f32 v10, 1.0, v7\nv_cvt_pk_bf16_f32 v10, v10, v10\nv_and_b32 v10, 0xffff0000, v10")
    e("s_waitcnt lgkmcnt(0)")
    T = BF + 16
    for fb in range(5):
        if fb == 4: e("s_bitcmp1_b32 s22, 0\ns_cbranch_scc1 L_g3_fin")
        t = T + fb * 8; z = BF + 2 * fb; acc = ACC + fb * 4
        e(f"v_lshlrev_b32 v{t}, 16, v{z}\nv_and_b32 v{t+1}, 0xffff0000, v{z}\nv_lshlrev_b32 v{t+2}, 16, v{z+1}\nv_and_b32 v{t+3}, 0xffff0000, v{z+1}")
        for i in range(4): e(f"v_mul_f32 v{t+i}, v{t+i}, v7")
        for i in range(4): e(f"v_fma_f32 v{t+i}, v{acc+i}, v10, v{t+i}")
        e(f"v_cvt_pk_bf16_f32 v{t+4}, v{t}, v{t+1}\nv_cvt_pk_bf16_f32 v{t+5}, v{t+2}, v{t+3}")
        e(f"buffer_store_dwordx2 {vr(t+4,2)}, v9, s[44:47], s33 offen offset:{fb*32} sc1")
    a.label("L_g3_fin")
    if st.on:
        st(); e("s_waitcnt vmcnt(0)"); st(); st.dump()
    a.label("L_g3_done")
    e("s_endpgm")
```

```python
import sys
from common import *
import os, importlib
import g3
g1 = importlib.import_module(os.environ.get('G1MOD', 'g1b'))
prep = importlib.import_module(os.environ.get('PREPMOD', 'prep3'))
g2 = importlib.import_module(os.environ.get('G2MOD', 'g2'))
def build():
    a = Asm()
    g1.gen_g1(a); prep.gen_prep(a); g2.gen_g2(a); g3.gen_g3(a)
    ref = open("gated_mix__ssm_conv_s4d__mixer_gmlp__prompt.s.ref").read().split("\n")
    head = [l for l in ref if l.startswith(";") and "@launch" not in l and "Override" not in l and "grid=ceil" not in l]
    head = head[:18]
    head += [
        f"; @launch kernel=g1_kernel grid=(256,1,1) block=({getattr(g1, 'G1_BLOCK', 512)},1,1) lds={g1.G1_LDS}",
        f"; @launch kernel=prep_kernel grid=({prep.PREP_GRID},1,1) block=(256,1,1) lds={prep.PREP_LDS}",
        f"; @launch kernel=g2_kernel grid=({g2.G2_GRID},1,1) block=({getattr(g2, 'G2_BLOCK', 256)},1,1) lds={g2.G2_LDS}",
        f"; @launch kernel=g3_kernel grid=(256,1,1) block=(256,1,1) lds={g3.G3_LDS}",
    ]
    body = a.text()
    import os, re
    if os.environ.get("TIMELINE"):
        parts = re.split(r"(?m)^(\w+_kernel):\n", body)
        out = parts[0]
        for i in range(1, len(parts), 2):
            name, code = parts[i], parts[i + 1]
            ki = i // 2
            m = re.search(r"(?m)^\.globl ", code)
            tail = ""
            if m: code, tail = code[:m.start()], code[m.start():]
            code = code.replace("s_endpgm", f"s_branch L_tl_{name}")
            out += f"{name}:\n    s_memrealtime s[96:97]\n    s_mov_b32 s95, s2\n    s_mov_b64 s[92:93], s[0:1]\n" + code
            out += f"""L_tl_{name}:
    s_waitcnt vmcnt(0) lgkmcnt(0)
    s_memrealtime s[98:99]
    s_load_dwordx2 s[88:89], s[92:93], 120
    s_mov_b64 exec, 1
    s_waitcnt lgkmcnt(0)
    s_mov_b32 s90, 0x10000000
    s_mov_b32 s91, 0x00020000
    s_lshl_b32 s94, s95, 3
    s_add_u32 s94, s94, {0x3800000 + ki * 0x4000}
    s_not_b32 s98, s98
    v_mov_b32 v0, 0
    v_mov_b32 v1, s96
    v_mov_b32 v2, s98
    buffer_atomic_umin v1, v0, s[88:91], s94 offen
    buffer_atomic_umin v2, v0, s[88:91], s94 offen offset:4
    s_waitcnt vmcnt(0)
    s_endpgm
""" + tail
        body = out
    s = "\n".join(head) + '\n.amdgcn_target "amdgcn-amd-amdhsa--gfx950"\n.text\n' + body
    s += '.section .rodata,"a"\n'
    s += kernel_desc("g1_kernel", g1.G1_VGPR) + kernel_desc("prep_kernel", prep.PREP_VGPR) + kernel_desc("g2_kernel", g2.G2_VGPR) + kernel_desc("g3_kernel", g3.G3_VGPR)
    return s
if __name__ == "__main__":
    out = sys.argv[1] if len(sys.argv) > 1 else "gated_mix__ssm_conv_s4d__mixer_gmlp__prompt.s"
    open(out, "w").write(build())
```

```python
from common import *
G3_RING = 4
G3_STAGE = 20480
G3_ATB = G3_RING * G3_STAGE
G3_LDS = G3_ATB + 12288
G3_VGPR = 128

def gen_g3(a, merged=False):
    e = a.e
    if not merged: kernel_head(a, "g3_kernel")
    ACC = 16; AF = 36; BF = 56
    if merged:
        a.label("L_g23_sync")
        st = Stamper(e, "G3"); st()
        e("s_load_dwordx4 s[4:7], s[0:1], 104")
        e(f"s_lshl_b32 s60, s24, 7\ns_lshl_b32 s61, s23, 2\ns_add_u32 s60, s60, s61\ns_add_u32 s60, s60, {FLAGS}")
    else:
        e("s_cmp_ge_u32 s2, 256\ns_cbranch_scc1 L_g3_done")
        st = Stamper(e, "G3"); st()
        e("s_load_dwordx2 s[4:5], s[0:1], 120")
        e("s_load_dwordx2 s[6:7], s[0:1], 104")
        e("v_lshrrev_b32 v2, 6, v0\nv_and_b32 v3, 63, v0\nv_lshlrev_b32 v1, 4, v3")
        e("v_readfirstlane_b32 s20, v2")
    e("v_add_u32 v4, 40960, v1")
    e("s_and_b32 s21, s2, 7\ns_lshr_b32 s22, s2, 3\ns_lshl_b32 s21, s21, 2\ns_and_b32 s23, s22, 3\ns_add_u32 s21, s21, s23\ns_lshr_b32 s22, s22, 2")
    e("s_mul_i32 s23, s22, 9\ns_add_u32 s23, s23, 1\ns_lshr_b32 s23, s23, 1")
    e("s_waitcnt lgkmcnt(0)")
    if merged:
        srd(e, 44, 4, 2359296)
        srd(e, 48, 6, 256)
    else:
        srd(e, 40, 4, WS_SIZE)
        srd(e, 44, 6, 2359296)
    e(f"s_mul_i32 s26, s20, 36864\ns_lshl_b32 s27, s23, 10\ns_add_u32 s26, s26, s27\ns_add_u32 s26, s26, {WOF}")
    e(f"s_bitcmp1_b32 s22, 0\ns_mov_b32 s28, 4096\ns_cselect_b32 s28, {OOB:#x}, s28")
    e("s_mul_i32 s27, s20, 5120")
    e(f"s_mul_i32 s30, s21, {72*4096}\ns_lshl_b32 s31, s20, 10\ns_add_u32 s30, s30, s31\ns_add_u32 s30, s30, {HF}")
    def batch(slot):
        out = []
        for q in range(4):
            out.append(f"s_add_u32 s33, s30, {q*4096}\nbuffer_load_dwordx4 {vr(BF+slot*16+q*4,4)}, v1, s[40:43], s33 offen" + (" sc1" if merged else ""))
        for i in range(4):
            out.append(f"s_add_u32 m0, s27, {slot*G3_STAGE + i*1024}\ns_add_u32 s33, s26, {i*1024}\nbuffer_load_dwordx4 v1, s[40:43], s33 offen lds")
        out.append(f"s_add_u32 m0, s27, {slot*G3_STAGE + 4096}\ns_add_u32 s33, s26, s28\nbuffer_load_dwordx4 v1, s[40:43], s33 offen lds")
        return out
    adv = f"s_add_u32 s26, s26, {4*36864}\ns_add_u32 s30, s30, 16384"
    def ldsread(slot, ks, fb):
        off = slot * G3_STAGE + ks * 5120 + fb * 1024
        base = "v1"
        if off >= 40960:
            off -= 40960; base = "v4"
        return f"ds_read_b128 {vr(AF+fb*4,4)}, {base} offset:{off}"
    def mfma(fb, bslot, ks):
        acc = ACC + fb * 4
        return f"v_mfma_f32_16x16x32_bf16 {vr(acc,4)}, {vr(AF+fb*4,4)}, {vr(BF+bslot*16+ks*4,4)}, {vr(acc,4)}"
    e("v_lshrrev_b32 v5, 3, v3\nv_lshlrev_b32 v5, 12, v5\nv_and_b32 v6, 7, v3\nv_lshl_add_u32 v5, v6, 4, v5")
    e(f"s_lshl_b32 s34, s23, 16\ns_lshl_b32 s35, s21, 7\ns_add_u32 s34, s34, s35\ns_lshl_b32 s35, s20, 15\ns_add_u32 s34, s34, s35\ns_add_u32 s34, s34, {AT}")
    e("s_lshl_b32 s35, s20, 10")
    e(f"v_and_b32 v6, 15, v3\nv_lshlrev_b32 v6, 2, v6\ns_lshl_b32 s36, s21, 8\ns_lshl_b32 s37, s20, 6\ns_add_u32 s36, s36, s37\ns_add_u32 s36, s36, {GATE}")
    if merged:
        e(f"v_mov_b32 v12, 0\nv_mov_b32 v13, 1\ns_lshr_b32 s61, s21, 1\ns_lshl_b32 s61, s61, 7\ns_add_u32 s61, s61, {FLAGS}\nv_and_b32 v15, 15, v3\nv_lshlrev_b32 v15, 2, v15")
        e("s_waitcnt vmcnt(0)\ns_barrier")
        e("s_cmp_lg_u32 s20, 0\ns_cbranch_scc1 L_g23_noadd")
        e("s_mov_b64 exec, 1\nbuffer_store_dword v13, v12, s[40:43], s60 offen sc1\ns_mov_b64 exec, -1")
        a.label("L_g23_noadd")
        for s in range(3):
            for x in batch(s)[4:]: e(x)
            e(f"s_add_u32 s26, s26, {4*36864}")
        for i in range(20): e(f"v_mov_b32 v{ACC+i}, 0")
        st()
        e("s_cmp_lg_u32 s20, 0\ns_cbranch_scc1 L_g23_go\ns_mov_b32 s62, 0")
        a.label("L_g23_poll")
        e("buffer_load_dword v14, v15, s[40:43], s61 offen sc1\ns_waitcnt vmcnt(0)\nv_cmp_ne_u32 vcc, 1, v14")
        e("s_add_u32 s62, s62, 1\ns_cbranch_vccz L_g23_go")
        e("s_sleep 1\ns_cmp_lt_u32 s62, 0x40000\ns_cbranch_scc1 L_g23_poll")
        a.label("L_g23_go")
        e("s_barrier")
        for s in range(3):
            for x in batch(s)[:4]: e(x)
            e("s_add_u32 s30, s30, 16384")
        e("s_waitcnt vmcnt(4)\ns_barrier")
        st()
    else:
        for s in range(3):
            for x in batch(s): e(x)
            e(adv)
        for i in range(20): e(f"v_mov_b32 v{ACC+i}, 0")
        st()
        e("s_waitcnt vmcnt(18)\ns_barrier")
        st()
    for fb in range(5): e(ldsread(0, 0, fb))
    for ks in range(3):
        for fb in range(5):
            e("s_waitcnt lgkmcnt(4)")
            e(mfma(fb, 0, ks))
            e(ldsread(0, ks + 1, fb))
    e("s_mov_b32 s38, 0")
    def body(u, issue, wait, tail=False, extra=None):
        nxt = (u + 1) % 4
        if not tail: e(f"s_waitcnt vmcnt({wait})\ns_barrier")
        o = batch((u + 3) % 4) if issue else list(extra or [])
        seq = [(u, 3, nxt, 0)] + [(nxt, ks, nxt, ks + 1) for ks in range(3)]
        if tail: seq = seq[:1]
        for (bs, ks, rs, rk) in seq:
            for fb in range(5):
                e(f"s_waitcnt lgkmcnt({4 - fb if tail else 4})")
                e(mfma(fb, bs, ks))
                if not tail: e(ldsread(rs, rk, fb))
                if o and fb % 2 == 0: e(o.pop(0))
        for x in o: e(x)
        if issue: e(adv)
    a.label("L_g3_loop")
    for u in range(4): body(u, True, 9)
    e("s_add_u32 s38, s38, 1\ns_cmp_lt_u32 s38, 3\ns_cbranch_scc1 L_g3_loop")
    st()
    for u in range(3): body(u, True, 9)
    ex = [f"s_add_u32 m0, s35, {G3_ATB + i*4096}\ns_add_u32 s33, s34, {i*32*4096}\nbuffer_load_dwordx4 v5, s[40:43], s33 offen lds" for i in range(3)]
    ex.append("buffer_load_dword v7, v6, s[40:43], s36 offen")
    body(3, False, 9, extra=ex)
    body(0, False, 4)
    body(1, False, 0, tail=True)
    st()
    e("s_waitcnt vmcnt(0)\ns_barrier")
    e("v_lshrrev_b32 v8, 4, v3\nv_lshlrev_b32 v8, 2, v8\nv_bfe_u32 v9, v3, 2, 2\nv_add_u32 v8, v8, v9\nv_lshlrev_b32 v8, 7, v8\nv_and_b32 v9, 3, v3\nv_lshl_add_u32 v8, v9, 3, v8")
    e(f"s_lshl_b32 s33, s20, 5\ns_add_u32 s33, s33, {G3_ATB}\nv_add_u32 v8, s33, v8")
    for fb in range(5): e(f"ds_read_b64_tr_b16 {vr(BF+2*fb,2)}, v8 offset:{fb*2048}")
    e("v_and_b32 v9, 15, v3\nv_mul_u32_u24 v9, 1152, v9\nv_lshrrev_b32 v10, 4, v3\nv_lshl_add_u32 v9, v10, 3, v9")
    e("s_lshl_b32 s33, s21, 2\ns_add_u32 s33, s33, s20\ns_mul_i32 s33, s33, 18432\ns_lshl_b32 s39, s23, 5\ns_add_u32 s33, s33, s39")
    e("v_sub_f32 v10, 1.0, v7\nv_cvt_pk_bf16_f32 v10, v10, v10\nv_and_b32 v10, 0xffff0000, v10")
    e("s_waitcnt lgkmcnt(0)")
    T = BF + 16
    for fb in range(5):
        if fb == 4: e("s_bitcmp1_b32 s22, 0\ns_cbranch_scc1 L_g3_fin")
        t = T + fb * 8; z = BF + 2 * fb; acc = ACC + fb * 4
        e(f"v_lshlrev_b32 v{t}, 16, v{z}\nv_and_b32 v{t+1}, 0xffff0000, v{z}\nv_lshlrev_b32 v{t+2}, 16, v{z+1}\nv_and_b32 v{t+3}, 0xffff0000, v{z+1}")
        for i in range(4): e(f"v_mul_f32 v{t+i}, v{t+i}, v7")
        for i in range(4): e(f"v_fma_f32 v{t+i}, v{acc+i}, v10, v{t+i}")
        e(f"v_cvt_pk_bf16_f32 v{t+4}, v{t}, v{t+1}\nv_cvt_pk_bf16_f32 v{t+5}, v{t+2}, v{t+3}")
        e(f"buffer_store_dwordx2 {vr(t+4,2)}, v9, s[44:47], s33 offen offset:{fb*32} sc1")
    a.label("L_g3_fin")
    if st.on:
        st(); e("s_waitcnt vmcnt(0)"); st(); st.dump()
    a.label("L_g3_done")
    e("s_endpgm")
```

```python
import sys
from common import *
import os, importlib
import g3
g1 = importlib.import_module(os.environ.get('G1MOD', 'g1b'))
prep = importlib.import_module(os.environ.get('PREPMOD', 'prep3'))
g2 = importlib.import_module(os.environ.get('G2MOD', 'g2'))
def build():
    a = Asm()
    M23 = getattr(g2, 'MERGE23', False)
    g1.gen_g1(a); prep.gen_prep(a); g2.gen_g2(a)
    if not M23: g3.gen_g3(a)
    ref = open("gated_mix__ssm_conv_s4d__mixer_gmlp__prompt.s.ref").read().split("\n")
    head = [l for l in ref if l.startswith(";") and "@launch" not in l and "Override" not in l and "grid=ceil" not in l]
    head = head[:18]
    head += [
        f"; @launch kernel=g1_kernel grid=(256,1,1) block=({getattr(g1, 'G1_BLOCK', 512)},1,1) lds={g1.G1_LDS}",
        f"; @launch kernel=prep_kernel grid=({prep.PREP_GRID},1,1) block=(256,1,1) lds={prep.PREP_LDS}",
        f"; @launch kernel=g2_kernel grid=({g2.G2_GRID},1,1) block=({getattr(g2, 'G2_BLOCK', 256)},1,1) lds={g2.G2_LDS}",
    ]
    if not M23: head.append(f"; @launch kernel=g3_kernel grid=(256,1,1) block=(256,1,1) lds={g3.G3_LDS}")
    body = a.text()
    import os, re
    if os.environ.get("TIMELINE"):
        parts = re.split(r"(?m)^(\w+_kernel):\n", body)
        out = parts[0]
        for i in range(1, len(parts), 2):
            name, code = parts[i], parts[i + 1]
            ki = i // 2
            m = re.search(r"(?m)^\.globl ", code)
            tail = ""
            if m: code, tail = code[:m.start()], code[m.start():]
            code = code.replace("s_endpgm", f"s_branch L_tl_{name}")
            out += f"{name}:\n    s_memrealtime s[96:97]\n    s_mov_b32 s95, s2\n    s_mov_b64 s[92:93], s[0:1]\n" + code
            out += f"""L_tl_{name}:
    s_waitcnt vmcnt(0) lgkmcnt(0)
    s_memrealtime s[98:99]
    s_load_dwordx2 s[88:89], s[92:93], 120
    s_mov_b64 exec, 1
    s_waitcnt lgkmcnt(0)
    s_mov_b32 s90, 0x10000000
    s_mov_b32 s91, 0x00020000
    s_lshl_b32 s94, s95, 3
    s_add_u32 s94, s94, {0x3800000 + ki * 0x4000}
    s_not_b32 s98, s98
    v_mov_b32 v0, 0
    v_mov_b32 v1, s96
    v_mov_b32 v2, s98
    buffer_atomic_umin v1, v0, s[88:91], s94 offen
    buffer_atomic_umin v2, v0, s[88:91], s94 offen offset:4
    s_waitcnt vmcnt(0)
    s_endpgm
""" + tail
        body = out
    s = "\n".join(head) + '\n.amdgcn_target "amdgcn-amd-amdhsa--gfx950"\n.text\n' + body
    s += '.section .rodata,"a"\n'
    s += kernel_desc("g1_kernel", g1.G1_VGPR) + kernel_desc("prep_kernel", prep.PREP_VGPR) + kernel_desc("g2_kernel", g2.G2_VGPR) + ("" if M23 else kernel_desc("g3_kernel", g3.G3_VGPR))
    return s
if __name__ == "__main__":
    out = sys.argv[1] if len(sys.argv) > 1 else "gated_mix__ssm_conv_s4d__mixer_gmlp__prompt.s"
    open(out, "w").write(build())
```
